```python
import torch

def _softmax(x, axis=-1):
    return torch.softmax(x, dim=axis)
def _gelu(x):
    return torch.nn.functional.gelu(x, approximate="tanh")
def _silu(x):
    return torch.nn.functional.silu(x)
def _sigmoid(x):
    return torch.sigmoid(x)
def _layernorm(x, axis=-1, eps=1e-5):
    m = x.mean(dim=axis, keepdim=True)
    v = x.var(dim=axis, keepdim=True, unbiased=False)
    return (x - m) / torch.sqrt(v + eps)
def _scatter_add(tgt, idx, src, axis=0):
    return tgt.clone().index_add_(axis, idx, src)
def _segment_sum(src, seg, n):
    out = torch.zeros((n,) + src.shape[1:], dtype=src.dtype)
    return out.index_add_(0, seg, src)
def _pad(x, pw):
    flat = tuple(v for pair in reversed(pw) for v in pair)
    return torch.nn.functional.pad(x, flat)

kernel_name = 'recurrent_scan__sliding_block_cached__mixer_s_mlp__prompt'

def setup_inputs():

    _w = (lambda a: (lambda t: t.to(torch.bfloat16) if t.is_floating_point() else t)(torch.as_tensor(a)))
    def _A_setup():
        B, Sq, D = 1, 2048, 512
        Hq, Hkv, Sk, Dh = 32, 32, 2048, 128
        assert Hq % Hkv == 0, (Hq, Hkv)
        return {
            "x": _w((lambda *s: torch.randn(*s, dtype=torch.bfloat16) * 0.05)(B, Sq, D)),
            "k_cache": _w((lambda *s: torch.randn(*s, dtype=torch.bfloat16) * 0.8)(B, Hkv, Sk, Dh)),
            "v_cache": _w((lambda *s: torch.randn(*s, dtype=torch.bfloat16) * 0.8)(B, Hkv, Sk, Dh)),
            "wq": _w((lambda *s: torch.randn(*s, dtype=torch.bfloat16) * 0.8)(D, Hq * Dh) * (D ** -0.5)),
            "wo": _w((lambda *s: torch.randn(*s, dtype=torch.bfloat16) * 0.8)(Hq * Dh, D) * ((Hq * Dh) ** -0.5)),
        }
    _A_in = _A_setup()

    def _B_setup():
        B, S, D, F = 1, 2048, 512, 1376
        return {
            "x":  _w((lambda *s: torch.randn(*s, dtype=torch.bfloat16) * 0.05)(B, S, D)),
            "w1": _w((lambda *s: torch.randn(*s, dtype=torch.bfloat16) * 3.2)(D, D) * (D ** -0.5)),
            "w2": _w((lambda *s: torch.randn(*s, dtype=torch.bfloat16) * 3.2)(D, D) * (D ** -0.5)),
            "w3": _w((lambda *s: torch.randn(*s, dtype=torch.bfloat16) * 3.2)(D, F) * (D ** -0.5)),
            "w4": _w((lambda *s: torch.randn(*s, dtype=torch.bfloat16) * 3.2)(F, D) * (F ** -0.5)),
        }
    _B_in = _B_setup()

    return {
        "A_x": _A_in["x"],
        "A_k_cache": _A_in["k_cache"],
        "A_v_cache": _A_in["v_cache"],
        "A_wq": _A_in["wq"],
        "A_wo": _A_in["wo"],
        "B_x": _B_in["x"],
        "B_w1": _B_in["w1"],
        "B_w2": _B_in["w2"],
        "B_w3": _B_in["w3"],
        "B_w4": _B_in["w4"],
    }

def reference(A_x, A_k_cache, A_v_cache, A_wq, A_wo, B_x, B_w1, B_w2, B_w3, B_w4):
    def _A_ref(x, k_cache, v_cache, wq, wo):
        B, Sq, D = x.shape
        Hq, Dh = 32, 128
        Hkv, Sk = k_cache.shape[1], k_cache.shape[2]
        W = min(4096, max(256, Sk // 4))
        rep = Hq // Hkv
        q = (lambda x, *d: x.permute(*d))((x @ wq).reshape(B, Sq, Hq, Dh), 0, 2, 1, 3)
        k = (lambda x, n, axis: torch.repeat_interleave(x, n, dim=axis))(k_cache[:, :, Sk - W:, :], rep, axis=1)
        v = (lambda x, n, axis: torch.repeat_interleave(x, n, dim=axis))(v_cache[:, :, Sk - W:, :], rep, axis=1)
        scores = torch.einsum("bhqd,bhkd->bhqk", q, k) * (Dh ** -0.5)
        p = _softmax(scores, axis=-1)
        o = torch.einsum("bhqk,bhkd->bhqd", p, v)
        return (lambda x, *d: x.permute(*d))(o, 0, 2, 1, 3).reshape(B, Sq, Hq * Dh) @ wo

    def _B_ref(x, w1, w2, w3, w4):
        B, S, D = x.shape
        h = _gelu(_layernorm(x, axis=-1) @ w1)
        c = D // 4
        g0 = _pad(h[:, :, 0*c:1*c], ((0, 0), (1, 0), (0, 0)))[:, :S, :]
        g1 = _pad(h[:, :, 1*c:2*c], ((0, 0), (0, 1), (0, 0)))[:, 1:, :]
        g2 = _pad(h[:, :, 2*c:3*c], ((0, 0), (2, 0), (0, 0)))[:, :S, :]
        g3 = _pad(h[:, :, 3*c:   ], ((0, 0), (0, 2), (0, 0)))[:, 2:, :]
        hs = torch.concatenate([g0, g1, g2, g3], axis=-1) @ w2
        x1 = x + hs
        h2 = _gelu(_layernorm(x1, axis=-1) @ w3) @ w4
        return x1 + h2

    x = A_x
    xn = _layernorm(x, axis=-1)
    s = _A_ref(xn, A_k_cache, A_v_cache, A_wq, A_wo)
    g = _silu(_B_ref(xn, B_w1, B_w2, B_w3, B_w4))
    return x + s * g
```

```python
import re

REG_RE = re.compile(r'^(-|abs\()?([vas])(\d+|\[(\d+):(\d+)\])\)?$')


def regs_of(op):
    op = op.strip()
    if op in ('vcc', 'exec', 'm0', 'scc'):
        return [(op, 0)]
    if op in ('vcc_lo', 'vcc_hi'):
        return [('vcc', 0)]
    if op in ('exec_lo', 'exec_hi'):
        return [('exec', 0)]
    m = REG_RE.match(op)
    if not m:
        return []
    f = m.group(2)
    if m.group(4) is not None:
        return [(f, i) for i in range(int(m.group(4)), int(m.group(5)) + 1)]
    return [(f, int(m.group(3)))]


TRANS = ('v_exp_f32', 'v_log_f32', 'v_rcp_f32', 'v_rsq_f32', 'v_sqrt_f32', 'v_sin_f32', 'v_cos_f32')


class Ins:
    __slots__ = ('text', 'mn', 'kind', 'reads', 'writes', 'tag', 'srcc', 'srcab', 'passes', 'data', 'states')

    def __init__(self, text, tag=None):
        self.text = text
        self.tag = tag
        self.srcc = set(); self.srcab = set(); self.passes = 0; self.data = set(); self.states = 1
        t = text.split(';')[0].strip()
        if not t or t.endswith(':') or t.startswith('.'):
            self.mn = t; self.kind = 'label' if t.endswith(':') else 'dir'
            self.reads = set(); self.writes = set(); self.states = 0
            return
        parts = t.split(None, 1)
        mn = parts[0]; self.mn = mn
        rest = parts[1] if len(parts) > 1 else ''
        ops = []; depth = 0; cur = ''
        for ch in rest:
            if ch in '[(': depth += 1
            if ch in '])': depth -= 1
            if ch == ',' and depth == 0:
                ops.append(cur.strip()); cur = ''
            else:
                cur += ch
        if cur.strip(): ops.append(cur.strip())
        mods = ''
        if ops:
            last = ops[-1].split(None, 1)
            ops[-1] = last[0]
            mods = last[1] if len(last) > 1 else ''
        R = [set(regs_of(o)) for o in ops]
        allr = set().union(*R) if R else set()
        rd = set().union(*R[1:]) if len(R) > 1 else set()
        wr = R[0] if R else set()
        if mn.startswith('v_mfma'):
            self.kind = 'mfma'
            self.passes = 8 if '32x32' in mn else 4
            self.srcab = R[1] | R[2]; self.srcc = R[3]
        elif mn.startswith('ds_read') or mn.startswith('ds_bpermute') or mn.startswith('ds_swizzle'):
            self.kind = 'ds_r'
        elif mn.startswith('ds_'):
            self.kind = 'ds_w'; rd = allr; wr = set()
        elif mn.startswith('buffer_load') or mn.startswith('global_load'):
            if ' lds' in (' ' + mods):
                self.kind = 'dma'; rd = allr | {('m0', 0)}; wr = set()
            else:
                self.kind = 'vm_l'
        elif mn.startswith('buffer_store') or mn.startswith('global_store'):
            self.kind = 'vm_s'; rd = allr; wr = set()
            if 'x3' in mn or 'x4' in mn:
                self.data = R[0] if mn.startswith('buffer') else R[1]
        elif mn.startswith('buffer_atomic') or mn.startswith('global_atomic'):
            self.kind = 'vm_s'; rd = allr; wr = set()
            if 'sc0' in mods: self.kind = 'vm_l'; wr = R[0]
        elif mn.startswith('buffer_') :
            self.kind = 'vm_s'; rd = set(); wr = set()
        elif mn.startswith('s_load') or mn.startswith('s_buffer_load') or mn.startswith('s_mem'):
            self.kind = 'smem'
        elif mn == 's_waitcnt':
            self.kind = 'wait'; rd = set(); wr = set()
        elif mn == 's_nop':
            self.kind = 'nop'; self.states = int(ops[0], 0) + 1; rd = set(); wr = set()
        elif mn == 's_barrier':
            self.kind = 'barrier'
        elif mn.startswith('s_cbranch') or mn in ('s_branch', 's_endpgm', 's_setpc_b64'):
            self.kind = 'branch'; rd = allr; wr = set()
        elif mn.startswith('s_cmp') or mn.startswith('s_bitcmp'):
            self.kind = 'salu'; rd = allr; wr = {('scc', 0)}
        elif mn in ('s_sleep', 's_setprio'):
            self.kind = 'salu'; rd = set(); wr = set()
        elif mn.startswith('s_'):
            self.kind = 'salu'
            if 'saveexec' in mn: wr = wr | {('exec', 0)}; rd = rd | {('exec', 0)}
            if mn.startswith('s_addk') or mn.startswith('s_mulk'): rd = rd | wr
        elif mn.startswith('v_'):
            base = mn.replace('_e32', '').replace('_e64', '')
            self.kind = 'trans' if base in TRANS else 'valu'
            if 'permlane' in mn and 'swap' in mn:
                rd = allr; wr = allr
            if base.startswith('v_fmac') or base.startswith('v_dot2c') or base.startswith('v_writelane') or base.startswith('v_pk_fmac'):
                rd = rd | wr
            if '_dpp' in mn or 'row_' in mods or 'quad_perm' in mods:
                rd = rd | wr
            if base.startswith('v_add_co') or base.startswith('v_sub_co') or base.startswith('v_addc_co'):
                wr = R[0] | R[1]; rd = set().union(*R[2:])
            if base.startswith('v_cndmask') and len(ops) == 3:
                rd = rd | {('vcc', 0)}
        else:
            raise ValueError('unknown instruction: ' + text)
        self.reads = rd; self.writes = wr
        if self.kind in ('valu', 'trans'):
            self.data = set()
            self.srcc = set()
            self.tag = tag

    def is_valu(self):
        return self.kind in ('valu', 'trans')


def isv(r):
    return r[0] in ('v', 'a')


class Asm:
    def __init__(self):
        self.ins = []
        self.vm = []
        self.lg = []
        self.nlabel = 0
        self.nwait = 0

    def label(self, base='L'):
        self.nlabel += 1
        return f'{base}_{self.nlabel}'

    def _wait(self, vm=None, lg=None):
        parts = []
        if vm is not None:
            vm = min(vm, 63)
            parts.append(f'vmcnt({vm})')
            if len(self.vm) > vm: self.vm = self.vm[len(self.vm) - vm:] if vm else []
        if lg is not None:
            if any(i.kind == 'smem' for i in self.lg): lg = 0
            lg = min(lg, 15)
            parts.append(f'lgkmcnt({lg})')
            if len(self.lg) > lg: self.lg = self.lg[len(self.lg) - lg:] if lg else []
        self.ins.append(Ins('s_waitcnt ' + ' '.join(parts)))
        self.nwait += 1

    def _need(self, q, pred):
        idx = -1
        for k, i in enumerate(q):
            if pred(i): idx = k
        return None if idx < 0 else len(q) - 1 - idx

    def wait_regs(self, regs):
        regs = set(regs)
        vm = self._need(self.vm, lambda i: i.writes & regs)
        lg = self._need(self.lg, lambda i: i.writes & regs)
        if vm is not None or lg is not None:
            self._wait(vm, lg)

    def wait_ops(self, *ops):
        r = set()
        for o in ops: r |= set(regs_of(o))
        self.wait_regs(r)

    def wait_tag(self, *tags, lg0=False):
        vm = self._need(self.vm, lambda i: i.tag in tags)
        lg = self._need(self.lg, lambda i: i.tag in tags)
        if lg0 and self.lg: lg = 0
        if vm is not None or lg is not None:
            self._wait(vm, lg)

    def wait_all(self, vm=True, lg=True):
        self._wait(0 if vm else None, 0 if lg else None)

    def wait_lg0(self):
        if self.lg: self._wait(None, 0)

    def e(self, text, tag=None):
        for line in text.split('\n'):
            line = line.strip()
            if not line or line.startswith(';'): continue
            i = Ins(line, tag)
            if i.kind == 'wait':
                m = re.search(r'vmcnt\((\d+)\)', line); v = int(m.group(1)) if m else None
                m = re.search(r'lgkmcnt\((\d+)\)', line); l = int(m.group(1)) if m else None
                self._wait(v, l)
                continue
            touch = i.reads | i.writes
            if touch: self.wait_regs(touch)
            self.ins.append(i)
            if i.kind in ('vm_l', 'vm_s', 'dma'):
                self.vm.append(i)
                if len(self.vm) > 63:
                    self.vm = self.vm[-63:]
            elif i.kind in ('ds_r', 'ds_w', 'smem'):
                self.lg.append(i)
        return self

    def raw(self, text):
        for line in text.split('\n'):
            line = line.strip()
            if line and not line.startswith(';'): self.ins.append(Ins(line))

    @staticmethod
    def need_states(p, c):
        n = 0
        pv = p.is_valu()
        if pv:
            w = p.writes
            wv = {r for r in w if isv(r)}
            ws = {r for r in w if not isv(r)}
            if c.kind == 'mfma' and (wv & c.reads): n = max(n, 2)
            if c.is_valu():
                if wv & c.reads:
                    if 'permlane' in c.mn or '_dpp' in c.mn or 'row_' in c.text or 'quad_perm' in c.text: n = max(n, 2)
                    if c.mn.startswith('v_readlane') or c.mn.startswith('v_readfirstlane'): n = max(n, 1)
                    if p.kind == 'trans' and c.kind != 'trans': n = max(n, 1)
                    if 'sdwa' in p.mn or 'op_sel:' in p.text: n = max(n, 1)
                if ws & c.reads:
                    n = max(n, 4 if (c.mn.startswith('v_readlane') or c.mn.startswith('v_writelane') or 'div_fmas' in c.mn) else 2)
            if c.kind in ('vm_l', 'vm_s', 'dma') and (ws & c.reads): n = max(n, 5)
            if c.kind in ('salu', 'branch') and (ws & c.reads): n = max(n, 1)
            if ('exec', 0) in w: n = max(n, 5)
        if p.kind == 'mfma':
            d = p.writes
            far = 12 if p.passes == 8 else 8
            if c.kind == 'mfma':
                if d & c.srcab: n = max(n, far)
                if d & c.srcc and not (d == c.srcc and p.passes == c.passes): n = max(n, far - 2)
                if d & c.writes and not (d & c.srcc) : n = max(n, far - 2) if d != c.writes or p.passes != c.passes else n
            elif c.kind in ('valu', 'trans', 'vm_l', 'vm_s', 'dma', 'ds_r', 'ds_w'):
                if d & (c.reads | c.writes): n = max(n, far)
                if c.is_valu() and (p.srcc & c.writes): n = max(n, 7 if p.passes == 8 else 3)
        if p.kind == 'salu' and ('m0', 0) in p.writes and ('m0', 0) in c.reads and c.kind != 'salu': n = max(n, 1)
        if p.kind == 'vm_s' and p.data and (p.data & c.writes): n = max(n, 2 if c.is_valu() else 1)
        return n

    def pad(self):
        out = []
        self.npad = 0
        for c in self.ins:
            if c.states and c.kind not in ('nop', 'wait', 'barrier'):
                need = 0; dist = 0
                for p in reversed(out):
                    if dist >= 12: break
                    if p.states == 0: continue
                    n = self.need_states(p, c) - dist
                    if n > need: need = n
                    dist += p.states
                if need > 0:
                    out.append(Ins(f's_nop {need - 1}'))
                    self.npad += 1
            out.append(c)
        self.ins = out

    def text(self):
        s = []
        for i in self.ins:
            s.append(i.text if i.kind == 'label' else '  ' + i.text)
        return '\n'.join(s) + '\n'


def interleave(a, mf, fill, pre=None):
    for k, m in enumerate(mf):
        if pre and k in pre:
            for f in pre[k]: put(a, f)
        put(a, m)
        for f in fill.get(k, []) if isinstance(fill, dict) else fill[k]:
            put(a, f)


def put(a, f):
    if callable(f): f(a)
    elif isinstance(f, tuple): a.e(f[0], f[1])
    else: a.e(f)


def spread(fill, items, lo, hi, front=False):
    n = len(items); span = hi - lo
    for j, it in enumerate(items):
        k = lo + (j * span) // n
        if front: fill.setdefault(k, []).insert(0, it)
        else: fill.setdefault(k, []).append(it)


def v(b, n=1):
    return f'v{b}' if n == 1 else f'v[{b}:{b + n - 1}]'


def ar(b, n=1):
    return f'a{b}' if n == 1 else f'a[{b}:{b + n - 1}]'


def sr(b, n=1):
    return f's{b}' if n == 1 else f's[{b}:{b + n - 1}]'


def kernel_text(name, body, vgpr=512, accum=256, sgpr=102):
    return f""".globl {name}
.p2align 8
.type {name},@function
{name}:
{body}"""


def kd_text(name, vgpr=512, accum=256, sgpr=102):
    return f""".p2align 6
.amdhsa_kernel {name}
  .amdhsa_next_free_vgpr {vgpr}
  .amdhsa_next_free_sgpr {sgpr}
  .amdhsa_accum_offset {accum}
  .amdhsa_group_segment_fixed_size 0
  .amdhsa_kernarg_size 104
  .amdhsa_user_sgpr_count 2
  .amdhsa_user_sgpr_kernarg_segment_ptr 1
  .amdhsa_system_sgpr_workgroup_id_x 1
.end_amdhsa_kernel
"""
```

```python
from common import *

QSLOT = WCH + 2048 + 32768
QS = [0, QSLOT, 2 * QSLOT]
KV_T = 16 * 1088
K_BASE = 2 * QSLOT
K_SLOT = [0, 2 * KV_T]
V_BASE = K_BASE - KV_T
V_SLOT = [2 * KV_T, 0]
LDS_ATT = K_BASE + 3 * KV_T

V_KR, V_VR, V_KD, V_VD, V_L, V_T = 1, 3, 4, 8, 12, 14
ACC = 16
V_WR, V_W1R, V_XR, V_WD, V_XD, V_W1D = 160, 163, 166, 172, 176, 180
V_ST, V_CS, V_TMP = 182, 192, 228
A_A, A_B = 0, 40
A_Q, A_K, A_V = 128, 192, 224
V_O, V_S, V_P = 16, 144, 208
S_SOQ, S_SO1, S_SOX, S_SOX2, S_SOK, S_M = 90, 91, 92, 93, 94, 95
S_MW, S_MW1, S_MX, S_MK = 96, 97, 98, 99
S_C1, S_C2 = 100, 101


def acc(b, nb):
    return ACC + (b * 4 + nb) * 4


def decode_wg(a):
    a.e(f's_and_b32 s{S_X}, s2, 7')
    a.e(f's_lshr_b32 s88, s2, 3')
    a.e(f's_and_b32 s{S_H}, s88, 3')
    a.e(f's_lshl_b32 s89, s{S_X}, 2')
    a.e(f's_add_u32 s{S_H}, s{S_H}, s89')
    a.e(f's_lshr_b32 s{S_RB}, s88, 2')


def qp_setup(a):
    t0, t1 = V_TMP, V_TMP + 1
    gen_w_dma_addr(a, 'nat', 8192, V_WD, t0, t1)
    a.e(f'v_lshrrev_b32 v{t0}, 3, v0')
    a.e(f'v_lshrrev_b32 v{t1}, 4, v0')
    a.e(f'v_xor_b32 v{t1}, v{t1}, v0')
    a.e(f'v_and_b32 v{t1}, 7, v{t1}')
    a.e(f'v_lshlrev_b32 v{t1}, 4, v{t1}')
    a.e(f'v_lshl_add_u32 v{V_XD}, v{t0}, 10, v{t1}')
    a.e(f'v_xor_b32 v{V_XD + 1}, 64, v{V_XD}')
    a.e(f'v_add_u32 v{V_XD + 1}, {8192 - 1024}, v{V_XD + 1}')
    a.e(f'v_add_u32 v{V_XD + 2}, {2 * (8192 - 1024)}, v{V_XD}')
    a.e(f'v_add_u32 v{V_XD + 3}, {2 * (8192 - 1024)}, v{V_XD + 1}')
    a.e(f'v_bfe_u32 v{t0}, v0, 1, 2')
    a.e(f'v_bfe_u32 v{t1}, v0, 4, 1')
    a.e(f'v_lshl_add_u32 v{t0}, v{t1}, 2, v{t0}')
    a.e(f'v_bfe_u32 v{t1}, v0, 3, 1')
    a.e(f'v_lshl_add_u32 v{t0}, v{t1}, 3, v{t0}')
    a.e(f'v_lshrrev_b32 v{t1}, 5, v0')
    a.e(f'v_lshl_add_u32 v{t0}, v{t1}, 4, v{t0}')
    a.e(f's_and_b32 s88, s{S_W}, 1')
    a.e(f's_lshl_b32 s89, s88, 5')
    a.e(f'v_add_u32 v{t0}, s89, v{t0}')
    a.e(f'v_and_b32 v{t1}, 1, v0')
    a.e(f'v_lshlrev_b32 v{t1}, 4, v{t1}')
    a.e(f'v_lshl_add_u32 v{V_W1D}, v{t0}, 10, v{t1}')
    a.e(f's_lshl_b32 s{S_SOQ}, s{S_H}, 8')
    a.e(f's_lshl_b32 s{S_SO1}, s{S_H}, 5')
    a.e(f's_lshl_b32 s{S_SOX}, s{S_RB}, 2')
    a.e(f's_add_u32 s{S_SOX}, s{S_SOX}, s{S_W}')
    a.e(f's_lshl_b32 s{S_SOX}, s{S_SOX}, 16')
    a.e(f's_add_u32 s{S_SOX2}, s{S_SOX}, 32768')
    a.e(f's_mul_i32 s{S_MW}, s{S_W}, 4224')
    a.e(f's_lshl_b32 s{S_MW1}, s88, 10')
    a.e(f's_add_u32 s{S_MW1}, s{S_MW1}, {WCH}')
    a.e(f's_lshl_b32 s{S_MX}, s{S_W}, 13')
    a.e(f's_add_u32 s{S_MX}, s{S_MX}, {WCH + 2048}')


def qp_dma_items(c):
    sl = QS[c % 3]; tag = ('Q', c); it = []
    it.append(f's_add_u32 m0, s{S_MX}, {sl}')
    for t in range(4):
        it.append((f'buffer_load_dwordx4 v{V_XD + t}, {srd("x")}, s{S_SOX} offen offset:{t * 1024} lds', tag))
    it.append(f's_add_u32 m0, s{S_MW}, {sl}')
    for t in range(4):
        it.append((f'buffer_load_dwordx4 v{V_WD + t}, {srd("wq")}, s{S_SOQ} offen offset:{t * BLK} lds', tag))
    it.append(f's_add_u32 m0, s{S_MX}, {sl + 4096}')
    for t in range(4):
        it.append((f'buffer_load_dwordx4 v{V_XD + t}, {srd("x")}, s{S_SOX2} offen offset:{t * 1024} lds', tag))
    it.append(f's_add_u32 m0, s{S_MW1}, {sl}')
    it.append((f'buffer_load_dwordx4 v{V_W1D}, {srd("w1")}, s{S_SO1} offen lds', tag))
    if c < 7:
        it.append(f's_add_u32 s{S_SOQ}, s{S_SOQ}, {64 * 8192}')
        it.append(f's_add_u32 s{S_SO1}, s{S_SO1}, {64 * 1024}')
        it.append(f's_add_u32 s{S_SOX}, s{S_SOX}, 128')
        it.append(f's_add_u32 s{S_SOX2}, s{S_SOX2}, 128')
    return it


def qp_setup_reads(a):
    t0, t1 = V_TMP, V_TMP + 1
    w_lane_read_addr(a, V_WR, t0, t1)
    a.e(f'v_add_u32 v{V_WR + 1}, {QS[1]}, v{V_WR}')
    a.e(f'v_add_u32 v{V_WR + 2}, {QS[2]}, v{V_WR}')
    a.e(f'v_bfe_u32 v{t0}, v0, 2, 3')
    a.e(f'v_lshlrev_b32 v{t0}, 5, v{t0}')
    a.e(f'v_lshrrev_b32 v{t1}, 5, v0')
    a.e(f'v_lshl_add_u32 v{t0}, v{t1}, 9, v{t0}')
    a.e(f'v_and_b32 v{t1}, 3, v0')
    a.e(f'v_lshl_add_u32 v{t0}, v{t1}, 3, v{t0}')
    for s in range(3):
        a.e(f'v_add_u32 v{V_W1R + s}, {QS[s] + WCH}, v{t0}')
    a.e(f'v_and_b32 v{t0}, 15, v0')
    a.e(f'v_lshrrev_b32 v{t1}, 1, v{t0}')
    a.e(f'v_lshlrev_b32 v{t0}, 7, v{t0}')
    a.e(f'v_lshrrev_b32 v{V_XR}, 4, v0')
    a.e(f'v_xor_b32 v{t1}, v{t1}, v{V_XR}')
    a.e(f'v_lshl_add_u32 v{t0}, v{t1}, 4, v{t0}')
    a.e(f'v_add_u32 v{V_XR}, s{S_MX}, v{t0}')
    a.e(f'v_xor_b32 v{V_XR + 1}, 64, v{V_XR}')
    for s in (1, 2):
        a.e(f'v_add_u32 v{V_XR + 2 * s}, {QS[s]}, v{V_XR}')
        a.e(f'v_add_u32 v{V_XR + 2 * s + 1}, {QS[s]}, v{V_XR + 1}')


def core_setup(a):
    t0, t1 = V_TMP, V_TMP + 1
    a.e(f'v_lshrrev_b32 v{t0}, 4, v0')
    a.e(f'v_and_b32 v{t1}, 15, v0')
    a.e(f's_lshl_b32 s88, s{S_W}, 12')
    a.e(f's_add_u32 s88, s88, {1536 * 256}')
    a.e(f'v_lshlrev_b32 v{V_VD}, 10, v{t0}')
    a.e(f'v_lshl_add_u32 v{V_VD}, v{t1}, 4, v{V_VD}')
    a.e(f'v_add_u32 v{V_VD}, s88, v{V_VD}')
    a.e(f'v_xor_b32 v{t1}, v{t1}, v{t0}')
    a.e(f'v_lshlrev_b32 v{t0}, 8, v{t0}')
    a.e(f'v_lshl_add_u32 v{t0}, v{t1}, 4, v{t0}')
    a.e(f'v_add_u32 v{V_KD}, s88, v{t0}')
    for t in range(1, 4):
        a.e(f'v_subrev_u32 v{V_KD + t}, {t * 64}, v{V_KD}')
        a.e(f'v_subrev_u32 v{V_VD + t}, {t * 832}, v{V_VD}')
    a.e(f's_lshl_b32 s{S_SOK}, s{S_H}, 19')
    a.e(f's_mul_i32 s{S_MK}, s{S_W}, 4352')
    a.e(f'v_bfe_u32 v{t0}, v0, 2, 3')
    a.e(f'v_mul_u32_u24 v{t0}, 1088, v{t0}')
    a.e(f'v_and_b32 v{t1}, 3, v0')
    a.e(f'v_lshl_add_u32 v{t0}, v{t1}, 8, v{t0}')
    a.e(f'v_lshrrev_b32 v{V_KR}, 5, v0')
    a.e(f'v_xor_b32 v{t1}, v{t1}, v{V_KR}')
    a.e(f'v_lshlrev_b32 v{t1}, 4, v{t1}')
    a.e(f'v_xor_b32 v{V_KR + 1}, 32, v{t1}')
    a.e(f'v_add3_u32 v{V_KR}, v{t0}, v{t1}, s89') if False else None
    a.e(f's_mov_b32 s89, {K_BASE}')
    a.e(f'v_add3_u32 v{V_KR}, v{t0}, v{t1}, s89')
    a.e(f'v_add3_u32 v{V_KR + 1}, v{t0}, v{V_KR + 1}, s89')
    a.e(f'v_bfe_u32 v{t0}, v0, 2, 2')
    a.e(f'v_mul_u32_u24 v{t0}, 1088, v{t0}')
    a.e(f'v_lshrrev_b32 v{t1}, 5, v0')
    a.e(f'v_lshl_add_u32 v{t0}, v{t1}, 8, v{t0}')
    a.e(f'v_bfe_u32 v{t1}, v0, 4, 1')
    a.e(f'v_lshl_add_u32 v{t0}, v{t1}, 5, v{t0}')
    a.e(f'v_and_b32 v{t1}, 3, v0')
    a.e(f'v_lshl_add_u32 v{t0}, v{t1}, 3, v{t0}')
    a.e(f'v_add_u32 v{V_VR}, {V_BASE}, v{t0}')


def k_dma_items(T):
    it = [f's_add_u32 m0, s{S_MK}, {K_BASE + K_SLOT[T & 1]}', f's_add_u32 s{S_M}, s{S_SOK}, {T * 16384}']
    for t in range(4):
        it.append((f'buffer_load_dwordx4 v{V_KD + t}, {srd("k")}, s{S_M} offen offset:{t * 1088} lds', ('K', T)))
    return it


def v_dma_items(T):
    it = [f's_add_u32 m0, s{S_MK}, {V_BASE + V_SLOT[T & 1]}', f's_add_u32 s{S_M}, s{S_SOK}, {T * 16384}']
    for t in range(4):
        it.append((f'buffer_load_dwordx4 v{V_VD + t}, {srd("v")}, s{S_M} offen offset:{t * 1088} lds', ('V', T)))
    return it


def qp_a_reads(kappa, b):
    c, ks = kappa >> 1, kappa & 1; sl = c % 3
    if b < 8:
        return [f'ds_read_b64_tr_b16 {ar(A_A + 4 * b + 2 * u, 2)}, v{V_WR + sl} offset:{ks * KS_BYTES + u * 256 + b * 32}' for u in (0, 1)]
    return [f'ds_read_b64_tr_b16 {ar(A_A + 32 + 2 * u, 2)}, v{V_W1R + sl} offset:{ks * 1024 + u * 256}' for u in (0, 1)]


def qp_b_read(kappa, nb):
    c, ks = kappa >> 1, kappa & 1; sl = c % 3
    return f'ds_read_b128 {ar(A_B + 16 * ks + 4 * nb, 4)}, v{V_XR + 2 * sl + ks} offset:{nb * 2048}'


def k_read(it, s):
    T, kh = it >> 1, it & 1
    return f'ds_read_b128 {ar(A_K + 4 * s, 4)}, v{V_KR + (s & 1)} offset:{K_SLOT[T & 1] + kh * 8704 + (s >> 1) * 64}'


def v_reads(it, sp, db):
    T, kh = it >> 1, it & 1
    return [f'ds_read_b64_tr_b16 {ar(A_V + 16 * sp + 4 * db + 2 * u, 2)}, v{V_VR} offset:{V_SLOT[T & 1] + (2 * kh + sp) * 4352 + u * 512 + db * 64}' for u in (0, 1)]


def barrier(*tags):
    def f(a):
        a.wait_tag(*tags, lg0=True)
        a.e('s_barrier')
    return f


def wait_lg(n):
    def f(a):
        if len(a.lg) > n: a._wait(None, n)
    return f


def qp_main(a, extra_fill=None):
    a.wait_tag(('Q', 0)); a.e('s_barrier')
    for nb in range(4): a.e(qp_b_read(0, nb))
    for b in range(9):
        for r in qp_a_reads(0, b): a.e(r)
    for kappa in range(16):
        c, ks = kappa >> 1, kappa & 1
        mf = []
        for b in range(9):
            for nb in range(4):
                d = v(acc(b, nb), 4)
                mf.append(f'v_mfma_f32_16x16x32_bf16 {d}, {ar(A_A + 4 * b, 4)}, {ar(A_B + 16 * ks + 4 * nb, 4)}, {d if kappa else 0}')
        fill = {}; pre = {0: [wait_lg(2)]}
        nxt = kappa + 1
        first = 3
        if ks == 1:
            first = 7
            if c < 7: fill.setdefault(7, []).append(barrier(('Q', c + 1)))
            else: fill.setdefault(7, []).append(barrier(('K', 0)))
        if nxt < 16:
            for b in range(9):
                pos = max(4 * b + 3, first + (b if 4 * b + 3 <= first else 0))
                rr = qp_a_reads(nxt, b)
                fill.setdefault(pos, []).append(rr[0])
                fill.setdefault(min(pos + 1, 35), []).append(rr[1])
            for nb in range(4):
                fill.setdefault(first + 2 + 4 * nb + (0 if first == 3 else 1), []).append(qp_b_read(nxt, nb))
        else:
            for s in range(8): fill.setdefault(8 + 2 * s, []).append(k_read(0, s))
        items = []
        if ks == 1 and c + 3 <= 7: items = qp_dma_items(c + 3)
        if ks == 1 and c == 5: items = k_dma_items(0) + v_dma_items(0) + k_dma_items(1)
        if items: spread(fill, items, 9, 36)
        if extra_fill and kappa in extra_fill: spread(fill, extra_fill[kappa], 9, 36)
        interleave(a, mf, fill, pre)


def stats_loads(tag='st'):
    t0, t1 = V_TMP + 2, V_TMP + 3
    it = [f'v_and_b32 v{t0}, 15, v0', f'v_lshlrev_b32 v{t0}, 3, v{t0}',
          f's_lshl_b32 s88, s{S_RB}, 2', f's_add_u32 s88, s88, s{S_W}', f's_lshl_b32 s88, s88, 9']
    for nb in range(4):
        it.append((f'buffer_load_dwordx2 {v(V_ST + 2 * nb, 2)}, v{t0}, {srd("ws")}, s88 offen offset:{nb * 128}', tag))
    it += [f'v_lshrrev_b32 v{t1}, 4, v0', f'v_lshlrev_b32 v{t1}, 4, v{t1}',
           f's_lshl_b32 s89, s{S_H}, 9', f's_add_u32 s89, s89, {WS_CSQ}']
    for b in range(8):
        it.append((f'buffer_load_dwordx4 {v(V_CS + 4 * b, 4)}, v{t1}, {srd("ws")}, s89 offen offset:{b * 64}', tag))
    it += [f's_lshl_b32 s88, s{S_H}, 6', f's_add_u32 s88, s88, {WS_CS1}']
    it.append((f'buffer_load_dwordx4 {v(V_CS + 32, 4)}, v{t1}, {srd("ws")}, s88 offen', tag))
    return it


QSCALE = 1.4426950408889634 * 128 ** -0.5
EPS = 1e-5


def qp_epilogue(a, sc=''):
    T = V_TMP
    a.e(f's_mov_b32 s88, {fbits(QSCALE)}')
    a.e(f's_mov_b32 s89, {fbits(-EPS)}')
    a.e(f'v_mov_b32 v{T}, {fbits(1.0 + EPS)}')
    for nb in range(4):
        r = V_ST + 2 * nb + 1
        a.e(f'v_mul_f32 v{T + 12 + nb}, v{r}, v{r}')
        a.e(f'v_fma_f32 v{T + 12 + nb}, v{T + 12 + nb}, s89, v{T}')
        a.e(f'v_rsq_f32 v{T + 12 + nb}, v{T + 12 + nb}')
        a.e(f'v_mul_f32 v{T + 8 + nb}, s88, v{r}')
    for nb in range(4):
        a.e(f'v_mul_f32 v{T + 12 + nb}, v{T + 12 + nb}, v{V_ST + 2 * nb + 1}')

    def corr(b, nb, scale):
        d = acc(b, nb); m = V_ST + 2 * nb
        sp = scale & ~1; osel = scale & 1
        o = []
        for p in (0, 2):
            o.append(f'v_pk_fma_f32 {v(d + p, 2)}, {v(m, 2)}, {v(V_CS + 4 * b + p, 2)}, {v(d + p, 2)} op_sel_hi:[0,1,1] neg_lo:[1,0,0] neg_hi:[1,0,0]')
        for p in (0, 2):
            o.append(f'v_pk_mul_f32 {v(d + p, 2)}, {v(d + p, 2)}, {v(sp, 2)} op_sel:[0,{osel}] op_sel_hi:[1,{osel}]')
        return o
    a.e(f's_mov_b32 s{S_C2}, {fbits(GELU_C2)}')
    a.e(f'v_mov_b32 v{T + 16}, {fbits(GELU_C1)}')
    emit_staged(a, [corr(8, nb, T + 12 + nb) for nb in range(4)])
    for half in range(2):
        emit_staged(a, [gelu_ops(acc(8, 0) + 8 * half + e, T + e, T + 16, S_C2) for e in range(8)])
    H = T
    for nb in range(4):
        d = acc(8, nb)
        a.e(f'v_cvt_pk_bf16_f32 v{H + 2 * nb}, v{d}, v{d + 1}')
        a.e(f'v_cvt_pk_bf16_f32 v{H + 2 * nb + 1}, v{d + 2}, v{d + 3}')
    t0, t1 = T + 17, T + 18
    a.e(f'v_bfe_u32 v{t0}, v0, 4, 1')
    a.e(f'v_lshlrev_b32 v{t0}, 14, v{t0}')
    a.e(f'v_lshrrev_b32 v{t1}, 5, v0')
    a.e(f'v_lshl_add_u32 v{t0}, v{t1}, 8, v{t0}')
    a.e(f'v_and_b32 v{t1}, 15, v0')
    a.e(f'v_lshl_add_u32 v{t0}, v{t1}, 4, v{t0}')
    a.e(f's_lshl_b32 s88, s{S_RB}, 2')
    a.e(f's_add_u32 s88, s88, s{S_W}')
    a.e(f's_lshl_b32 s88, s88, 16')
    a.e(f's_lshl_b32 s89, s{S_H}, 9')
    a.e(f's_add_u32 s88, s88, s89')
    a.e(f's_add_u32 s89, s88, 32768')
    for j in range(2):
        for r in range(2):
            a.e(f'v_permlane16_swap_b32 v{H + 4 * j + r}, v{H + 4 * j + 2 + r}')
    for j in range(2):
        a.e(f'buffer_store_dwordx4 {v(H + 4 * j, 4)}, v{t0}, {srd("h")}, s{88 + j} offen {sc}', 'hst')
    for Qb in range(2):
        for b0 in range(0, 8, 2):
            emit_staged(a, [corr(b, 2 * Qb + q, T + 8 + 2 * Qb + q) for b in (b0, b0 + 1) for q in (0, 1)])
            for b in (b0, b0 + 1):
                for q in (0, 1):
                    d = acc(b, 2 * Qb + q); R = acc(b, 2 * Qb)
                    if q == 0:
                        a.e(f'v_cvt_pk_bf16_f32 v{R}, v{d}, v{d + 1}')
                        a.e(f'v_cvt_pk_bf16_f32 v{R + 1}, v{d + 2}, v{d + 3}')
                    else:
                        a.e(f'v_cvt_pk_bf16_f32 v{R + 2}, v{d}, v{d + 1}')
                        a.e(f'v_cvt_pk_bf16_f32 v{R + 3}, v{d + 2}, v{d + 3}')
            for b in (b0, b0 + 1):
                R = acc(b, 2 * Qb)
                for r in range(2): a.e(f'v_permlane16_swap_b32 v{R + r}, v{R + 2 + r}')
            for b in (b0, b0 + 1):
                R = acc(b, 2 * Qb)
                for r in range(4): a.e(f'v_accvgpr_write_b32 a{A_Q + (Qb * 8 + b) * 4 + r}, v{R + r}')


def S(p, Qb): return V_S + 32 * p + 16 * Qb
def P(p, Qb): return V_P + 16 * p + 8 * Qb
def O(db, Qb): return V_O + (db * 2 + Qb) * 16


def softmax_items(i):
    p = i & 1; out = []
    for e in range(32):
        Qb, r = e >> 4, e & 15
        x = S(p, Qb) + r
        ex = f'v_exp_f32 v{x}, v{x}'
        ad = f'v_add_f32 v{V_L + Qb}, v{V_L + Qb}, v{x}' if (i or r) else f'v_mov_b32 v{V_L + Qb}, v{x}'
        cv = f'v_cvt_pk_bf16_f32 v{P(p, Qb) + (r >> 1)}, v{x - 1}, v{x}' if r & 1 else None
        out.append((ex, ad, cv))
    seq = []
    for e in range(33):
        g = []
        if e < 32: g.append(out[e][0])
        if e >= 1:
            g.append(out[e - 1][1])
            if out[e - 1][2]: g.append(out[e - 1][2])
        seq.append(g)
    return seq


def core(a, tail_items=None):
    def qk(i):
        p = i & 1; l = []
        for s in range(8):
            for Qb in range(2):
                d = v(S(p, Qb), 16)
                l.append(f'v_mfma_f32_32x32x16_bf16 {d}, {ar(A_K + 4 * s, 4)}, {ar(A_Q + (Qb * 8 + s) * 4, 4)}, {d if s else 0}')
        return l

    def pv(i):
        p = i & 1; l = []
        for sp in range(2):
            for db in range(4):
                for Qb in range(2):
                    d = v(O(db, Qb), 16)
                    l.append(f'v_mfma_f32_32x32x16_bf16 {d}, {ar(A_V + 16 * sp + 4 * db, 4)}, {v(P(p, Qb) + 4 * sp, 4)}, {d if (i or sp) else 0}')
        return l

    for i in range(-1, 17):
        mf = []; mem = {}; val = {}; pre = {}
        hasqk = i + 1 <= 15; haspv = i - 1 >= 0
        if hasqk: mf += qk(i + 1)
        npv0 = len(mf)
        if haspv: mf += pv(i - 1)
        n = len(mf)
        dma = []
        if i >= 0 and i % 2 == 0 and i <= 14:
            j = i // 2
            tags = [('V', j)] + ([('K', j + 1)] if j + 1 <= 7 else [])
            bpos = 15 if i > 0 else 1
            mem.setdefault(bpos, []).append(barrier(*tags))
            if j + 2 <= 7: dma += k_dma_items(j + 2)
            if j + 1 <= 7: dma += v_dma_items(j + 1)
        if i + 2 <= 15:
            if haspv:
                for s in range(8): mem.setdefault(npv0 + s, []).append(k_read(i + 2, s))
            else:
                for s in range(8): mem.setdefault(2 * s + 1, []).append(k_read(i + 2, s))
        if hasqk and haspv:
            rs = [r for sp in range(2) for db in range(4) for r in v_reads(i - 1, sp, db)]
            spread(mem, rs, 0, 13)
            if i % 2 == 1: pre[npv0] = [wait_lg(0)]
        if i in (14, 15):
            for sp in range(2):
                for db in range(4):
                    for r in v_reads(i, sp, db): mem.setdefault(npv0 + 8 * sp + 2 * db + 1, []).append(r)
        if hasqk and i >= 1: pre[0] = [wait_lg(0)]
        if dma:
            if i == 0: spread(mem, dma, 2, 16)
            else: spread(mem, dma, npv0 + 8, n)
        if tail_items and i in tail_items: spread(mem, tail_items[i], 0, n)
        if 0 <= i <= 15:
            seq = softmax_items(i)
            if n == 32:
                for e in range(32): val.setdefault(e, []).extend(seq[e])
                val[31].extend(seq[32])
            else:
                for e in range(32): val.setdefault(e // 2, []).extend(seq[e])
                val[15].extend(seq[32])
        fill = {k: mem.get(k, []) + val.get(k, []) for k in range(n)}
        interleave(a, mf, fill, pre)


def o_epilogue(a, store=True, sc=''):
    T = V_S
    for Qb in range(2):
        a.e(f'v_mov_b32 v{T + Qb}, v{V_L + Qb}')
    for Qb in range(2):
        a.e(f'v_permlane32_swap_b32 v{T + Qb}, v{V_L + Qb}')
    for Qb in range(2):
        a.e(f'v_add_f32 v{V_L + Qb}, v{V_L + Qb}, v{T + Qb}')
    for Qb in range(2):
        a.e(f'v_rcp_f32 v{T + Qb}, v{V_L + Qb}')
    t0, t1 = T + 2, T + 3
    a.e(f'v_bfe_u32 v{t0}, v0, 4, 1')
    a.e(f'v_lshlrev_b32 v{t0}, 17, v{t0}')
    a.e(f'v_lshrrev_b32 v{t1}, 5, v0')
    a.e(f'v_lshl_add_u32 v{t0}, v{t1}, 9, v{t0}')
    a.e(f'v_and_b32 v{t1}, 15, v0')
    a.e(f'v_lshl_add_u32 v{t0}, v{t1}, 4, v{t0}')
    a.e(f's_lshl_b32 s88, s{S_RB}, 2')
    a.e(f's_add_u32 s88, s88, s{S_W}')
    a.e(f's_lshl_b32 s88, s88, 19')
    a.e(f's_lshl_b32 s89, s{S_H}, 12')
    a.e(f's_add_u32 s88, s88, s89')
    a.e(f's_add_u32 s88, s88, {WS_O}')
    a.e(f's_add_u32 s89, s88, 262144')
    for Qb in range(2):
        for db in range(4):
            d = O(db, Qb)
            for p in range(0, 16, 2):
                a.e(f'v_pk_mul_f32 {v(d + p, 2)}, {v(d + p, 2)}, {v(T, 2)} op_sel:[0,{Qb}] op_sel_hi:[1,{Qb}]')
            for p in range(8):
                a.e(f'v_cvt_pk_bf16_f32 v{d + p}, v{d + 2 * p}, v{d + 2 * p + 1}')
            if store:
                for t in range(2):
                    a.e(f'buffer_store_dwordx4 {v(d + 4 * t, 4)}, v{t0}, {srd("ws")}, s{88 + Qb} offen offset:{db * 1024 + t * 256} {sc}', 'ost')


def attn_kernel(name):
    a = Asm()
    end = name + '_end'
    prologue(a, ['x', 'wq', 'w1', 'k', 'v', 'ws', 'h'], 256, end)
    decode_wg(a)
    qp_setup(a)
    for c in range(3):
        for it in qp_dma_items(c): put(a, it)
    qp_setup_reads(a)
    core_setup(a)
    qp_main(a, {12: stats_loads()})
    qp_epilogue(a)
    core(a)
    o_epilogue(a)
    a.wait_all()
    a.raw(end + ':')
    a.e('s_endpgm')
    a.pad()
    return a
```

```python
import sys
from common import *
import attn, gemms
HDR = open('recurrent_scan__sliding_block_cached__mixer_s_mlp__prompt.s.ref').read().split('; Override launch')[0]
def build(kernels, path):
    s = HDR
    for name, a, grid, lds in kernels:
        s += f'; @launch kernel={name} grid=({grid},1,1) block=(256,1,1) lds={lds}\n'
    s += '.amdgcn_target "amdgcn-amd-amdhsa--gfx950"\n.text\n'
    seen = set()
    for name, a, grid, lds in kernels:
        if name in seen: continue
        seen.add(name)
        s += kernel_text(name, a.text())
        print(name, 'instr', len(a.ins), 'waits', a.nwait, 'pads', a.npad, file=sys.stderr)
    s += '.section .rodata,"a"\n'
    for name in dict.fromkeys(k[0] for k in kernels): s += kd_text(name)
    open(path, 'w').write(s)
if __name__ == '__main__':
    ks = [('k0_kernel', gemms.k0_kernel('k0_kernel'), 256, 4096),
          ('attn_kernel', attn.attn_kernel('attn_kernel'), 256, attn.LDS_ATT),
          ('m2_kernel', gemms.m2_kernel('m2_kernel'), 64, 4 * WCH),
          ('m3a_kernel', gemms.m3a_kernel('m3a_kernel'), 176, 4 * WCH),
          ('op_kernel', gemms.op_kernel('op_kernel'), 256, 4 * WCH),
          ('fin_kernel', gemms.fin_kernel('fin_kernel'), 256, 4 * gemms.F_NS * gemms.F_KS)]
    build(ks, sys.argv[1] if len(sys.argv) > 1 else 'v1.s')
```

```python
from asmlib import *

WS_STATS = 0x0
WS_CSQ = 0x4000
WS_CS1 = 0x8000
WS_CS3 = 0x9000
WS_ST1 = 0x10000
WS_FLAG = 0x20000
WS_H = 0x100000
WS_X1 = 0x300000
WS_H3 = 0x500000
WS_O = 0x1000000
WS_PART = 0x2000000
WS_SIZE = 0x10000000

SRD = dict(x=36, k=40, v=44, wq=48, wo=52, w1=56, w2=60, w3=64, w4=68, out=72, ws=76, h=80, dbg=84)
PTR = dict(x=8, k=10, v=12, wq=14, wo=16, w1=20, w2=22, w3=24, w4=26, out=28, dbg=30, ws=32)
SIZE = dict(x=2 << 20, k=16 << 20, v=16 << 20, wq=4 << 20, wo=4 << 20, w1=512 << 10, w2=512 << 10,
            w3=512 * 1376 * 2, w4=1376 * 512 * 2, out=2 << 20, ws=WS_SIZE, dbg=256, h=2 << 20)

S_W, S_RB, S_H, S_X = 3, 4, 5, 6
BIAS = 128
BIASED = ('wo', 'w2', 'w4')


def srd(n):
    return sr(SRD[n], 4)


def prologue(a, need, nwg, endlabel):
    a.e(f's_cmp_ge_u32 s2, {nwg}')
    a.e(f's_cbranch_scc1 {endlabel}')
    a.e('s_load_dwordx16 s[8:23], s[0:1], 0')
    a.e('s_load_dwordx8 s[24:31], s[0:1], 64')
    a.e('s_load_dwordx2 s[32:33], s[0:1], 96')
    a.e('v_lshrrev_b32 v1, 6, v0')
    a.e('v_and_b32 v0, 63, v0')
    a.e(f'v_readfirstlane_b32 s{S_W}, v1')
    a.wait_all(vm=False)
    for n in need:
        d = SRD[n]
        if n == 'h':
            a.e(f's_add_u32 s{d}, s32, {WS_H}')
            a.e(f's_addc_u32 s{d + 1}, s33, 0')
            a.e(f's_and_b32 s{d + 1}, s{d + 1}, 0xffff')
        elif n in BIASED:
            p = PTR[n]
            a.e(f's_sub_u32 s{d}, s{p}, {BIAS}')
            a.e(f's_subb_u32 s{d + 1}, s{p + 1}, 0')
            a.e(f's_and_b32 s{d + 1}, s{d + 1}, 0xffff')
        else:
            p = PTR[n]
            a.e(f's_mov_b32 s{d}, s{p}')
            a.e(f's_and_b32 s{d + 1}, s{p + 1}, 0xffff')
        a.e(f's_mov_b32 s{d + 2}, {SIZE[n] + (BIAS if n in BIASED else 0)}')
        a.e(f's_mov_b32 s{d + 3}, 0x20000')


def fbits(x):
    import struct
    return '0x%08x' % struct.unpack('<I', struct.pack('<f', x))[0]


BLK = 1056
KS_BYTES = 8 * BLK
WCH = 2 * KS_BYTES


def w_row(order, i, u, g0, g1):
    if order == 'nat': return i + 4 * u + 8 * g0 + 16 * g1
    if order == 'd16': return i + 4 * g0 + 8 * g1 + 16 * u
    if order == 'd32': return i + 4 * g1 + 8 * u + 16 * g0
    raise ValueError


def w_row_coef(order):
    return w_row(order, 0, 1, 0, 0), w_row(order, 0, 0, 1, 0), w_row(order, 0, 0, 0, 1)


def gen_w_dma_addr(a, order, stride, vdst, t0, t1):
    cu, cg0, cg1 = w_row_coef(order)
    a.e(f'v_bfe_u32 v{t0}, v0, 4, 1')
    a.e(f'v_mul_u32_u24 v{t0}, {cu}, v{t0}')
    a.e(f'v_lshrrev_b32 v{t1}, 5, v0')
    a.e(f'v_mul_u32_u24 v{t1}, {cg1}, v{t1}')
    a.e(f'v_add_u32 v{t0}, v{t0}, v{t1}')
    a.e(f's_and_b32 s88, s{S_W}, 1')
    a.e(f's_mul_i32 s88, s88, {cg0}')
    a.e(f's_lshr_b32 s89, s{S_W}, 1')
    a.e(f's_lshl_b32 s89, s89, 5')
    a.e(f's_add_u32 s88, s88, s89')
    a.e(f'v_add_u32 v{t0}, s88, v{t0}')
    a.e(f's_mov_b32 s89, {stride}')
    a.e(f'v_mul_lo_u32 v{t0}, v{t0}, s89')
    a.e(f'v_and_b32 v{t1}, 15, v0')
    a.e(f'v_lshl_add_u32 v{vdst}, v{t1}, 4, v{t0}')
    if stride < BLK:
        a.e(f'v_add_u32 v{vdst}, {BIAS}, v{vdst}')
    for t in range(1, 4):
        d = t * (stride - BLK)
        a.e(f'v_add_u32 v{vdst + t}, {d}, v{vdst}' if d >= 0 else f'v_subrev_u32 v{vdst + t}, {-d}, v{vdst}')


def w_lane_read_addr(a, vdst, t0, t1, base=0):
    a.e(f'v_bfe_u32 v{t0}, v0, 2, 3')
    a.e(f'v_mul_u32_u24 v{t0}, {BLK}, v{t0}')
    a.e(f'v_lshrrev_b32 v{t1}, 5, v0')
    a.e(f'v_lshl_add_u32 v{t0}, v{t1}, 9, v{t0}')
    a.e(f'v_and_b32 v{t1}, 3, v0')
    a.e(f'v_lshl_add_u32 v{vdst}, v{t1}, 3, v{t0}')
    if base: a.e(f'v_add_u32 v{vdst}, {base}, v{vdst}')


GELU_C1 = -2.0 * 0.7978845608028654 * 1.4426950408889634
GELU_C2 = GELU_C1 * 0.044715


def gelu_ops(x, t, sc1, sc2):
    return [f'v_mul_f32 v{t}, v{x}, v{x}',
            f'v_fma_f32 v{t}, v{t}, s{sc2}, v{sc1}',
            f'v_mul_f32 v{t}, v{t}, v{x}',
            f'v_exp_f32 v{t}, v{t}',
            f'v_add_f32 v{t}, 1.0, v{t}',
            f'v_rcp_f32 v{t}, v{t}',
            f'v_mul_f32 v{x}, v{x}, v{t}']


def emit_staged(a, chains):
    n = max(len(c) for c in chains)
    for s in range(n):
        for c in chains:
            if s < len(c): a.e(c[s])
```

```python
from common import *
from attn import barrier, wait_lg, decode_wg, EPS

S_SOW, S_MW, S_CT, S_RT = 90, 91, 92, 93
S_C2 = 101


def w_dma_items(wname, c, slot_base, vwd, stride, last):
    it = [f's_add_u32 m0, s{S_MW}, {slot_base}']
    for t in range(4):
        it.append((f'buffer_load_dwordx4 v{vwd + t}, {srd(wname)}, s{S_SOW} offen offset:{t * BLK} lds', ('W', c)))
    if not last: it.append(f's_add_u32 s{S_SOW}, s{S_SOW}, {64 * stride}')
    return it


def gemm_main(a, NB, accf, areg, bfrag, vwr, slots, wname, vwd, stride, npre, extra=None, nch=8):
    ns = len(slots)

    def a_reads(kappa, b):
        c, ks = kappa >> 1, kappa & 1
        reg, off = vwr(c % ns)
        return [f'ds_read_b64_tr_b16 {areg(4 * b + 2 * u, 2)}, v{reg} offset:{off + ks * KS_BYTES + u * 256 + b * 32}' for u in (0, 1)]
    a.wait_tag(('W', 0)); a.e('s_barrier')
    for b in range(8):
        for r in a_reads(0, b): a.e(r)
    nk = 2 * nch
    G = NB
    for kappa in range(nk):
        c, ks = kappa >> 1, kappa & 1
        mf = []
        for b in range(8):
            for nb in range(NB):
                d = accf(b, nb)
                mf.append(f'v_mfma_f32_16x16x32_bf16 {d}, {areg(4 * b, 4)}, {bfrag(kappa, nb)}, {d if kappa else 0}')
        n = len(mf)
        fill = {}; pre = {0: [wait_lg(2)]}
        first = G - 1
        if ks == 1 and c + 1 < nch:
            first = 2 * G - 1 if G == 4 else 3 * G - 1
            fill.setdefault(first, []).append(barrier(('W', c + 1)))
        if kappa + 1 < nk:
            q = [(max(G * b + G - 1, first), r) for b in range(8) for r in a_reads(kappa + 1, b)]
            pos = 0; cnt = 0; cap = 1 if G == 4 else 2
            for p, r in q:
                if p > pos: pos = p; cnt = 0
                if cnt >= cap and pos < n - 1: pos += 1; cnt = 0
                fill.setdefault(pos, []).append(r); cnt += 1
        if ks == 1 and c + npre < nch:
            cc = c + npre
            assert cc % ns == c % ns or npre < ns
            spread(fill, w_dma_items(wname, cc, slots[cc % ns], vwd, stride, cc == nch - 1), first + 1, n)
        if extra and kappa in extra: spread(fill, extra[kappa], 1, n)
        interleave(a, mf, fill, pre)


def tile_decode_128(a, nct):
    a.e(f's_and_b32 s{S_X}, s2, 7')
    a.e(f's_lshr_b32 s88, s2, 3')
    a.e(f's_cmp_ge_u32 s88, {nct}')
    a.e(f's_cselect_b32 s89, 1, 0')
    a.e(f's_cselect_b32 s{S_CT}, {nct}, 0')
    a.e(f's_sub_u32 s{S_CT}, s88, s{S_CT}')
    a.e(f's_lshl_b32 s{S_RT}, s{S_X}, 1')
    a.e(f's_add_u32 s{S_RT}, s{S_RT}, s89')


G_ACC, G_WR, G_WD, G_BA, G_T, G_X, G_CS, G_ST = 16, 1, 4, 8, 80, 96, 128, 160
GA_A, GA_B = 128, 0
G_SLOTS = [i * WCH for i in range(4)]


def g_acc(b, nb): return G_ACC + (b * 2 + nb) * 4


def lane_piece(a, vdst, t, rowstride16):
    a.e(f'v_lshlrev_b32 v{vdst}, 4, v0')


def g128_common(a, wname, order, stride):
    t0, t1 = G_T, G_T + 1
    gen_w_dma_addr(a, order, stride, G_WD, t0, t1)
    a.e(f's_lshl_b32 s{S_SOW}, s{S_CT}, 8')
    a.e(f's_mul_i32 s{S_MW}, s{S_W}, 4224')
    for c in range(4):
        for it in w_dma_items(wname, c, G_SLOTS[c], G_WD, stride, False): put(a, it)
    w_lane_read_addr(a, G_WR, t0, t1)
    a.e(f'v_add_u32 v{G_WR + 1}, {2 * WCH}, v{G_WR}')


def g_vwr(slot): return (G_WR + (slot >> 1), (slot & 1) * WCH)


def m2_kernel(name, sc=''):
    a = Asm(); end = name + '_end'
    prologue(a, ['x', 'w2', 'ws', 'h'], 64, end)
    tile_decode_128(a, 4)
    t0, t1 = G_T, G_T + 1
    a.e(f's_lshl_b32 s94, s{S_RT}, 2')
    a.e(f's_add_u32 s94, s94, s{S_W}')
    a.e(f's_lshl_b32 s94, s94, 5')
    a.e(f'v_and_b32 v{t0}, 15, v0')
    a.e(f'v_add_u32 v{t0}, s94, v{t0}')
    a.e(f'v_lshrrev_b32 v{t1}, 4, v0')
    a.e(f'v_lshlrev_b32 v{t1}, 8, v{t1}')
    a.e(f's_mov_b32 s95, 2048')
    a.e(f'v_mov_b32 v{G_T + 4}, 0x40000000')
    for grp, dlt in enumerate((-1, 1, -2, 2)):
        for nb in range(2):
            r = G_T + 2; o = G_BA + grp * 2 + nb
            a.e(f'v_add_u32 v{r}, {16 * nb + dlt}, v{t0}')
            a.e(f'v_cmp_gt_u32 vcc, s95, v{r}')
            a.e(f'v_lshrrev_b32 v{o}, 4, v{r}')
            a.e(f'v_lshl_add_u32 v{o}, v{o}, 14, v{t1}')
            a.e(f'v_and_b32 v{r}, 15, v{r}')
            a.e(f'v_lshl_add_u32 v{o}, v{r}, 4, v{o}')
            a.e(f'v_add_u32 v{o}, {grp * 4096}, v{o}')
            a.e(f'v_cndmask_b32 v{o}, v{G_T + 4}, v{o}, vcc')
    for kappa in range(16):
        for nb in range(2):
            a.e(f'buffer_load_dwordx4 {ar(GA_B + (kappa * 2 + nb) * 4, 4)}, v{G_BA + (kappa >> 2) * 2 + nb}, {srd("h")}, 0 offen offset:{(kappa & 3) * 1024} {sc}')
        if kappa == 1: g128_common(a, 'w2', 'nat', 1024)
    a.e(f'v_and_b32 v{t0}, 15, v0')
    a.e(f'v_lshrrev_b32 v{t1}, 4, v0')
    a.e(f'v_lshlrev_b32 v{t1}, 3, v{t1}')
    a.e(f'v_lshl_add_u32 v{G_T + 2}, v{t0}, 10, v{t1}')
    a.e(f'v_lshlrev_b32 v{G_T + 3}, 3, v{t0}')
    a.e(f's_lshl_b32 s96, s94, 10')
    a.e(f's_lshl_b32 s97, s{S_CT}, 8')
    a.e(f's_add_u32 s96, s96, s97')
    a.e(f's_add_u32 s97, s96, 16384')
    a.e(f's_lshl_b32 s98, s94, 3')
    ex = []
    for nb in range(2):
        ex.append(f'buffer_load_dwordx2 {v(G_ST + 2 * nb, 2)}, v{G_T + 3}, {srd("ws")}, s98 offen offset:{nb * 128} {sc}')
        for b in range(8):
            ex.append(f'buffer_load_dwordx2 {v(G_X + (b * 2 + nb) * 2, 2)}, v{G_T + 2}, {srd("x")}, s{96 + nb} offen offset:{b * 32}')
    gemm_main(a, 2, lambda b, nb: v(g_acc(b, nb), 4), lambda o, n: ar(GA_A + o, n),
              lambda k, nb: ar(GA_B + (k * 2 + nb) * 4, 4), g_vwr, G_SLOTS, 'w2', G_WD, 1024, 4,
              extra={8: ex[:9], 10: ex[9:]})
    SUM = G_T + 6
    a.e(f's_mov_b32 s99, 0xffff0000')
    for nb in range(2):
        m, rs = G_ST + 2 * nb, G_ST + 2 * nb + 1
        a.e(f'v_mul_f32 v{m}, v{m}, v{rs}')
        for b in range(8):
            d = g_acc(b, nb); x = G_X + (b * 2 + nb) * 2; u = G_T + 10
            a.e(f'v_lshlrev_b32 v{u}, 16, v{x}')
            a.e(f'v_and_b32 v{u + 1}, s99, v{x}')
            a.e(f'v_lshlrev_b32 v{u + 2}, 16, v{x + 1}')
            a.e(f'v_and_b32 v{u + 3}, s99, v{x + 1}')
            for i in range(4): a.e(f'v_fma_f32 v{u + i}, v{u + i}, v{rs}, -v{m}')
            for i in range(4): a.e(f'v_add_f32 v{d + i}, v{d + i}, v{u + i}')
            for i in range(4):
                if b == 0 and i == 0:
                    a.e(f'v_mov_b32 v{SUM + 2 * nb}, v{d}')
                    a.e(f'v_mul_f32 v{SUM + 2 * nb + 1}, v{d}, v{d}')
                else:
                    a.e(f'v_add_f32 v{SUM + 2 * nb}, v{SUM + 2 * nb}, v{d + i}')
                    a.e(f'v_fmac_f32 v{SUM + 2 * nb + 1}, v{d + i}, v{d + i}')
    store_pieces(a, 2, g_acc, 64, WS_X1, 's94', f's{S_CT}', sc, 4)
    u = G_T + 10
    for swap in ('v_permlane16_swap_b32', 'v_permlane32_swap_b32'):
        for j in range(4): a.e(f'v_mov_b32 v{u + j}, v{SUM + j}')
        for j in range(4): a.e(f'{swap} v{u + j}, v{SUM + j}')
        for j in range(4): a.e(f'v_add_f32 v{SUM + j}, v{SUM + j}, v{u + j}')
    a.e(f'v_lshlrev_b32 v{u}, 5, v0')
    a.e(f's_lshl_b32 s96, s94, 5')
    a.e(f's_lshl_b32 s97, s{S_CT}, 3')
    a.e(f's_add_u32 s96, s96, s97')
    a.e(f's_add_u32 s96, s96, {WS_ST1}')
    a.e('s_mov_b64 exec, 0xffff')
    for nb in range(2):
        a.e(f'buffer_store_dwordx2 {v(SUM + 2 * nb, 2)}, v{u}, {srd("ws")}, s96 offen offset:{nb * 512} {sc}')
    a.e('s_mov_b64 exec, -1')
    a.wait_all()
    a.raw(end + ':'); a.e('s_endpgm'); a.pad()
    return a


def store_pieces(a, NB, accf, fg, base, srow0, sct, sc, nS, skip_last_if=None, tmp=None, extra_soff=None):
    t = G_T + 14 if tmp is None else tmp
    a.e(f'v_lshlrev_b32 v{t}, 4, v0')
    a.e(f's_lshr_b32 s88, {srow0}, 4')
    a.e(f's_mul_i32 s88, s88, {fg * 256}')
    a.e(f's_lshl_b32 s89, {sct}, {10 + (nS.bit_length() - 1)}')
    a.e(f's_add_u32 s88, s88, s89')
    a.e(f's_add_u32 s88, s88, {base}')
    if extra_soff: a.e(f's_add_u32 s88, s88, {extra_soff}')
    for nb in range(NB):
        lab = None
        for Sp in range(nS):
            d0, d1 = accf(2 * Sp, nb), accf(2 * Sp + 1, nb)
            a.e(f'v_cvt_pk_bf16_f32 v{d0}, v{d0}, v{d0 + 1}')
            a.e(f'v_cvt_pk_bf16_f32 v{d0 + 1}, v{d0 + 2}, v{d0 + 3}')
            a.e(f'v_cvt_pk_bf16_f32 v{d0 + 2}, v{d1}, v{d1 + 1}')
            a.e(f'v_cvt_pk_bf16_f32 v{d0 + 3}, v{d1 + 2}, v{d1 + 3}')
            if skip_last_if is not None and Sp == nS - 1:
                lab = a.label('skip')
                a.e(f's_cmp_eq_u32 {sct}, {skip_last_if}')
                a.e(f's_cbranch_scc1 {lab}')
            a.e(f'buffer_store_dwordx4 {v(d0, 4)}, v{t}, {srd("ws")}, s88 offen offset:{Sp * 1024} {sc}', 'pst')
            if lab: a.raw(lab + ':')
        if nb + 1 < NB: a.e(f's_add_u32 s88, s88, {fg * 256}')


def m3a_kernel(name, sc=''):
    a = Asm(); end = name + '_end'
    prologue(a, ['w3', 'ws'], 176, end)
    tile_decode_128(a, 11)
    t0, t1 = G_T, G_T + 1
    a.e(f's_lshl_b32 s94, s{S_RT}, 2')
    a.e(f's_add_u32 s94, s94, s{S_W}')
    a.e(f's_lshl_b32 s94, s94, 5')
    a.e(f'v_lshlrev_b32 v{G_BA}, 4, v0')
    a.e(f's_lshl_b32 s95, s94, 10')
    a.e(f's_add_u32 s95, s95, {WS_X1}')
    for kappa in range(16):
        for nb in range(2):
            if (kappa & 3) == 0: a.e(f's_add_u32 s{96 + nb}, s95, {nb * 16384 + (kappa >> 2) * 4096}')
            a.e(f'buffer_load_dwordx4 {ar(GA_B + (kappa * 2 + nb) * 4, 4)}, v{G_BA}, {srd("ws")}, s{96 + nb} offen offset:{(kappa & 3) * 1024} {sc}')
        if kappa == 1: g128_common(a, 'w3', 'd16', 2752)
    a.e(f'v_and_b32 v{t0}, 15, v0')
    a.e(f'v_lshlrev_b32 v{G_T + 2}, 5, v{t0}')
    a.e(f'v_lshrrev_b32 v{t1}, 4, v0')
    a.e(f'v_lshlrev_b32 v{G_T + 3}, 4, v{t1}')
    a.e(f's_lshl_b32 s98, s94, 5')
    a.e(f's_add_u32 s98, s98, {WS_ST1}')
    a.e(f's_lshl_b32 s99, s{S_CT}, 9')
    a.e(f's_add_u32 s99, s99, {WS_CS3}')
    ex = []
    for nb in range(2):
        for hf in range(2):
            ex.append(f'buffer_load_dwordx4 {v(G_X + nb * 8 + hf * 4, 4)}, v{G_T + 2}, {srd("ws")}, s98 offen offset:{nb * 512 + hf * 16} {sc}')
    for b in range(8):
        ex.append(f'buffer_load_dwordx4 {v(G_CS + 4 * b, 4)}, v{G_T + 3}, {srd("ws")}, s99 offen offset:{b * 64} {sc}')
    gemm_main(a, 2, lambda b, nb: v(g_acc(b, nb), 4), lambda o, n: ar(GA_A + o, n),
              lambda k, nb: ar(GA_B + (k * 2 + nb) * 4, 4), g_vwr, G_SLOTS, 'w3', G_WD, 2752, 4,
              extra={8: ex})
    a.e(f's_mov_b32 s96, {fbits(1.0 / 512)}')
    a.e(f's_mov_b32 s{S_C2}, {fbits(GELU_C2)}')
    a.e(f'v_mov_b32 v{G_T + 15}, {fbits(GELU_C1)}')
    for nb in range(2):
        x = G_X + nb * 8; m = G_ST + 2 * nb
        a.e(f'v_pk_add_f32 {v(x, 2)}, {v(x, 2)}, {v(x + 2, 2)}')
        a.e(f'v_pk_add_f32 {v(x + 4, 2)}, {v(x + 4, 2)}, {v(x + 6, 2)}')
        a.e(f'v_pk_add_f32 {v(x, 2)}, {v(x, 2)}, {v(x + 4, 2)}')
        a.e(f'v_mul_f32 v{m}, s96, v{x}')
        a.e(f'v_mul_f32 v{m + 1}, s96, v{x + 1}')
        a.e(f'v_fma_f32 v{m + 1}, -v{m}, v{m}, v{m + 1}')
        a.e(f'v_max_f32 v{m + 1}, 0, v{m + 1}')
        a.e(f'v_add_f32 v{m + 1}, {fbits(EPS)}, v{m + 1}')
        a.e(f'v_rsq_f32 v{m + 1}, v{m + 1}')
    for nb in range(2):
        m = G_ST + 2 * nb
        for b in range(8):
            d = g_acc(b, nb)
            for p in (0, 2):
                a.e(f'v_pk_fma_f32 {v(d + p, 2)}, {v(m, 2)}, {v(G_CS + 4 * b + p, 2)}, {v(d + p, 2)} op_sel_hi:[0,1,1] neg_lo:[1,0,0] neg_hi:[1,0,0]')
            for p in (0, 2):
                a.e(f'v_pk_mul_f32 {v(d + p, 2)}, {v(d + p, 2)}, {v(m, 2)} op_sel:[0,1] op_sel_hi:[1,1]')
    for q in range(8):
        emit_staged(a, [gelu_ops(G_ACC + 8 * q + e, G_T + e, G_T + 15, S_C2) for e in range(8)])
    store_pieces(a, 2, g_acc, 172, WS_H3, 's94', f's{S_CT}', sc, 4, skip_last_if=10)
    a.wait_all()
    a.raw(end + ':'); a.e('s_endpgm'); a.pad()
    return a


def op_acc(b, nb): return 16 + (b * 4 + nb) * 4


def op_kernel(name, sc=''):
    a = Asm(); end = name + '_end'
    prologue(a, ['wo', 'ws'], 256, end)
    decode_wg(a)
    T = 160
    a.e(f's_and_b32 s{S_CT}, s{S_H}, 3')
    a.e(f's_lshl_b32 s94, s{S_RB}, 2')
    a.e(f's_add_u32 s94, s94, s{S_W}')
    a.e(f's_lshl_b32 s95, s94, 19')
    a.e(f's_lshl_b32 s94, s94, 6')
    a.e(f's_lshl_b32 s96, s{S_X}, 14')
    a.e(f's_add_u32 s95, s95, s96')
    a.e(f's_add_u32 s95, s95, {WS_O}')
    a.e(f'v_lshlrev_b32 v{G_BA}, 4, v0')

    def bl(hh):
        it = []
        for nb in range(4):
            it.append(f's_add_u32 s96, s95, {nb * 131072 + hh * 4096}')
            for db in range(4):
                it.append(f'buffer_load_dwordx4 {ar(((hh % 3) * 16 + db * 4 + nb) * 4, 4)}, v{G_BA}, {srd("ws")}, s96 offen offset:{db * 1024} {sc}')
        return it
    for it in bl(0): a.e(it)
    gen_w_dma_addr(a, 'd32', 1024, G_WD, T, T + 1)
    a.e(f's_lshl_b32 s{S_SOW}, s{S_CT}, 8')
    a.e(f's_lshl_b32 s88, s{S_X}, 19')
    a.e(f's_add_u32 s{S_SOW}, s{S_SOW}, s88')
    a.e(f's_mul_i32 s{S_MW}, s{S_W}, 4224')
    for c in range(4):
        for it in w_dma_items('wo', c, G_SLOTS[c], G_WD, 1024, False): put(a, it)
        if c == 0:
            for it in bl(1): a.e(it)
    w_lane_read_addr(a, G_WR, T, T + 1)
    a.e(f'v_add_u32 v{G_WR + 1}, {2 * WCH}, v{G_WR}')
    gemm_main(a, 4, lambda b, nb: v(op_acc(b, nb), 4), lambda o, n: ar(192 + o, n),
              lambda k, nb: ar((((k >> 2) % 3) * 16 + (k & 3) * 4 + nb) * 4, 4), g_vwr, G_SLOTS, 'wo', G_WD, 1024, 4,
              extra={0: bl(2), 4: bl(3)})
    a.e(f's_lshl_b32 s97, s{S_X}, 21')
    store_pieces(a, 4, op_acc, 64, WS_PART, 's94', f's{S_CT}', sc, 4, tmp=T, extra_soff='s97')
    a.wait_all()
    a.raw(end + ':'); a.e('s_endpgm'); a.pad()
    return a


F_KS = 4 * BLK
F_NS = 9


def fin_kernel(name, sc=''):
    a = Asm(); end = name + '_end'
    prologue(a, ['x', 'w4', 'ws', 'out'], 256, end)
    a.e(f's_and_b32 s{S_X}, s2, 7')
    a.e(f's_lshr_b32 s88, s2, 3')
    a.e(f's_and_b32 s{S_CT}, s88, 7')
    a.e(f's_lshr_b32 s88, s88, 3')
    a.e(f's_lshl_b32 s{S_RT}, s{S_X}, 2')
    a.e(f's_add_u32 s{S_RT}, s{S_RT}, s88')
    T = 80; WD = 4; WR = 1; BA = 8
    ACCF = lambda b, nb: 16 + (b * 4 + nb) * 4
    a.e(f's_mul_i32 s94, s{S_W}, 11')
    a.e(f's_min_u32 s94, s94, 32')
    a.e(f'v_lshlrev_b32 v{BA}, 4, v0')
    a.e(f'v_mov_b32 v{BA + 1}, 0x40000000')
    a.e(f's_cmp_eq_u32 s{S_W}, 3')
    a.e(f's_cselect_b64 vcc, -1, 0')
    a.e(f'v_cndmask_b32 v{BA + 1}, v{BA}, v{BA + 1}, vcc')
    a.e(f's_mul_i32 s95, s{S_RT}, {4 * 172 * 256}')
    a.e(f's_lshl_b32 s96, s94, 10')
    a.e(f's_add_u32 s95, s95, s96')
    a.e(f's_add_u32 s95, s95, {WS_H3}')
    a.e(f'v_bfe_u32 v{T}, v0, 3, 1')
    a.e(f'v_lshlrev_b32 v{T}, 2, v{T}')
    a.e(f'v_bfe_u32 v{T + 1}, v0, 4, 1')
    a.e(f'v_lshl_add_u32 v{T}, v{T + 1}, 4, v{T}')
    a.e(f'v_lshrrev_b32 v{T + 1}, 5, v0')
    a.e(f'v_lshl_add_u32 v{T}, v{T + 1}, 3, v{T}')
    a.e(f'v_lshlrev_b32 v{T}, 10, v{T}')
    a.e(f'v_and_b32 v{T + 1}, 7, v0')
    a.e(f'v_lshl_add_u32 v{T}, v{T + 1}, 4, v{T}')
    a.e(f'v_add_u32 v{WD}, {BIAS}, v{T}')
    for t in range(1, 4): a.e(f'v_subrev_u32 v{WD + t}, {t * 32}, v{WD}')
    a.e(f's_lshl_b32 s{S_SOW}, s94, 15')
    a.e(f's_lshl_b32 s96, s{S_CT}, 7')
    a.e(f's_add_u32 s{S_SOW}, s{S_SOW}, s96')
    a.e(f's_mul_i32 s{S_MW}, s{S_W}, {F_NS * F_KS}')

    def wd(k):
        it = [f's_add_u32 m0, s{S_MW}, {(k % F_NS) * F_KS}']
        for t in range(4):
            it.append((f'buffer_load_dwordx4 v{WD + t}, {srd("w4")}, s{S_SOW} offen offset:{t * BLK} lds', ('W', k)))
        it.append(f's_add_u32 s{S_SOW}, s{S_SOW}, 32768')
        return it

    def bl(k):
        it = []
        for nb in range(4):
            it.append(f's_add_u32 s96, s95, {nb * 172 * 256 + k * 1024}')
            it.append(f'buffer_load_dwordx4 {ar((k * 4 + nb) * 4, 4)}, v{BA + (1 if k == 0 else 0)}, {srd("ws")}, s96 offen {sc}')
        return it
    for k in range(7):
        for it in wd(k) + bl(k): put(a, it)
    a.e(f'v_bfe_u32 v{T}, v0, 2, 2')
    a.e(f'v_mul_u32_u24 v{T}, {BLK}, v{T}')
    a.e(f'v_bfe_u32 v{T + 1}, v0, 4, 1')
    a.e(f'v_lshl_add_u32 v{T}, v{T + 1}, 7, v{T}')
    a.e(f'v_lshrrev_b32 v{T + 1}, 5, v0')
    a.e(f'v_lshl_add_u32 v{T}, v{T + 1}, 9, v{T}')
    a.e(f'v_and_b32 v{T + 1}, 3, v0')
    a.e(f'v_lshl_add_u32 v{T}, v{T + 1}, 3, v{T}')
    a.e(f'v_add_u32 v{WR}, s{S_MW}, v{T}')
    AA = 192

    def a_reads(k, b):
        return [f'ds_read_b64_tr_b16 {ar(AA + (k & 1) * 16 + 4 * b + 2 * u, 2)}, v{WR} offset:{(k % F_NS) * F_KS + u * 256 + b * 32}' for u in (0, 1)]
    E = 96
    ex = [f's_lshl_b32 s97, s{S_RT}, 2', f's_add_u32 s97, s97, s{S_W}', f's_lshl_b32 s98, s97, 14',
          f's_lshl_b32 s99, s{S_CT}, 11', f's_add_u32 s98, s98, s99', f's_add_u32 s99, s98, {WS_X1}']
    for Sp in range(2):
        ex.append(f'buffer_load_dwordx4 {v(160 + 4 * Sp, 4)}, v{BA}, {srd("ws")}, s99 offen offset:{Sp * 1024} {sc}')
    ex.append(f's_add_u32 s99, s98, {WS_PART}')
    for j in range(8):
        for Sp in range(2):
            ex.append(f'buffer_load_dwordx4 {v(E + (j * 2 + Sp) * 4, 4)}, v{BA}, {srd("ws")}, s99 offen offset:{Sp * 1024} {sc}')
        if j < 7: ex.append(f's_add_u32 s99, s99, {2 << 20}')
    ex2 = [f'v_and_b32 v{T + 2}, 15, v0', f'v_lshrrev_b32 v{T + 3}, 4, v0', f'v_lshlrev_b32 v{T + 3}, 3, v{T + 3}',
           f'v_lshl_add_u32 v{BA + 2}, v{T + 2}, 10, v{T + 3}', f's_lshl_b32 s100, s97, 14', f's_lshl_b32 s99, s{S_CT}, 7',
           f's_add_u32 s100, s100, s99']
    for b in range(4):
        ex2.append(f'buffer_load_dwordx2 {v(168 + 2 * b, 2)}, v{BA + 2}, {srd("x")}, s100 offen offset:{b * 32}')
    a.wait_tag(('W', 0))
    for b in range(4):
        for r in a_reads(0, b): a.e(r)
    for k in range(11):
        mf = []
        for b in range(4):
            for nb in range(4):
                d = v(ACCF(b, nb), 4)
                mf.append(f'v_mfma_f32_16x16x32_bf16 {d}, {ar(AA + (k & 1) * 16 + 4 * b, 4)}, {ar((k * 4 + nb) * 4, 4)}, {d if k else 0}')
        fill = {}; pre = {0: [wait_lg(0)]}
        if k + 1 < 11:
            fill[0] = [(lambda kk: (lambda a_: a_.wait_tag(('W', kk))))(k + 1)]
            spread(fill, [r for b in range(4) for r in a_reads(k + 1, b)], 0, 8)
        if k + 7 < 11: spread(fill, wd(k + 7) + bl(k + 7), 4, 16)
        if k == 4: spread(fill, ex, 0, 16)
        if k == 5: spread(fill, ex2, 0, 16)
        interleave(a, mf, fill, pre)
    a.e(f'v_lshlrev_b32 v{T}, 4, v0')
    a.e(f'v_add_u32 v{T + 1}, s{S_MW}, v{T}')
    for nb in range(4):
        for b in range(4):
            a.e(f'ds_write_b128 v{T + 1}, {v(ACCF(b, nb), 4)} offset:{nb * 4096 + b * 1024}')
    a.e(f's_lshl_b32 s96, s{S_W}, 12')
    a.e(f'v_add_u32 v{T}, s96, v{T}')
    a.e(f'v_add_u32 v{T + 1}, {2 * F_NS * F_KS}, v{T}')
    a.wait_lg0(); a.e('s_barrier')
    for w in range(4):
        for b in range(4):
            a.e(f'ds_read_b128 {v(ACCF(w, b), 4)}, v{T + (w >> 1)} offset:{(w & 1) * F_NS * F_KS + b * 1024}')
    SS = 176; U = T + 4
    a.e(f's_mov_b32 s99, 0xffff0000')
    for Sp in range(2):
        for r in range(4):
            o = SS + Sp * 8 + 2 * r
            for j in range(8):
                x = E + (j * 2 + Sp) * 4 + r
                if j == 0:
                    a.e(f'v_lshlrev_b32 v{o}, 16, v{x}')
                    a.e(f'v_and_b32 v{o + 1}, s99, v{x}')
                else:
                    a.e(f'v_lshlrev_b32 v{U}, 16, v{x}')
                    a.e(f'v_and_b32 v{U + 1}, s99, v{x}')
                    a.e(f'v_pk_add_f32 {v(o, 2)}, {v(o, 2)}, {v(U, 2)}')
    H = 16
    for p in range(0, 16, 2):
        a.e(f'v_pk_add_f32 {v(H + p, 2)}, {v(H + p, 2)}, {v(H + 16 + p, 2)}')
        a.e(f'v_pk_add_f32 {v(H + 32 + p, 2)}, {v(H + 32 + p, 2)}, {v(H + 48 + p, 2)}')
    for p in range(0, 16, 2):
        a.e(f'v_pk_add_f32 {v(H + p, 2)}, {v(H + p, 2)}, {v(H + 32 + p, 2)}')
    X1 = 32; XX = 48; TT = 64
    for r in range(8):
        a.e(f'v_lshlrev_b32 v{X1 + 2 * r}, 16, v{160 + r}')
        a.e(f'v_and_b32 v{X1 + 2 * r + 1}, s99, v{160 + r}')
        a.e(f'v_lshlrev_b32 v{XX + 2 * r}, 16, v{168 + r}')
        a.e(f'v_and_b32 v{XX + 2 * r + 1}, s99, v{168 + r}')
    a.e(f's_mov_b32 s98, {fbits(-1.4426950408889634)}')
    ch = []
    for e in range(16):
        y = H + e; t = TT + e
        ch.append([f'v_add_f32 v{y}, v{y}, v{X1 + e}', f'v_mul_f32 v{t}, s98, v{y}', f'v_exp_f32 v{t}, v{t}',
                   f'v_add_f32 v{t}, 1.0, v{t}', f'v_rcp_f32 v{t}, v{t}', f'v_mul_f32 v{y}, v{y}, v{SS + e}',
                   f'v_fma_f32 v{y}, v{y}, v{t}, v{XX + e}'])
    emit_staged(a, ch)
    for b in range(4):
        a.e(f'v_cvt_pk_bf16_f32 v{X1 + 2 * b}, v{H + 4 * b}, v{H + 4 * b + 1}')
        a.e(f'v_cvt_pk_bf16_f32 v{X1 + 2 * b + 1}, v{H + 4 * b + 2}, v{H + 4 * b + 3}')
    for b in range(4):
        a.e(f'buffer_store_dwordx2 {v(X1 + 2 * b, 2)}, v{BA + 2}, {srd("out")}, s100 offen offset:{b * 32}')
    a.wait_all()
    a.raw(end + ':'); a.e('s_endpgm'); a.pad()
    return a


def row_stats(a, srow0, T, sc=''):
    a.e(f'v_lshlrev_b32 v{T}, 5, v0')
    a.e(f's_lshl_b32 s88, {srow0}, 10')
    a.e(f'buffer_load_dwordx4 {v(T + 4, 4)}, v{T}, {srd("x")}, s88 offen')
    a.e(f'buffer_load_dwordx4 {v(T + 8, 4)}, v{T}, {srd("x")}, s88 offen offset:16')
    a.e(f's_mov_b32 s89, 0xffff0000')
    X = T + 12
    for r in range(8):
        a.e(f'v_lshlrev_b32 v{X + 2 * r}, 16, v{T + 4 + r}')
        a.e(f'v_and_b32 v{X + 2 * r + 1}, s89, v{T + 4 + r}')

    def red(s):
        for sh in (8, 4, 2, 1):
            a.e(f'v_add_f32_dpp v{s}, v{s}, v{s} row_ror:{sh} row_mask:0xf bank_mask:0xf')
        a.e(f'v_mov_b32 v{T + 1}, v{s}')
        a.e(f'v_permlane16_swap_b32 v{T + 1}, v{s}')
        a.e(f'v_add_f32 v{s}, v{s}, v{T + 1}')
    a.e(f'v_add_f32 v{T + 2}, v{X}, v{X + 1}')
    for e in range(2, 16): a.e(f'v_add_f32 v{T + 2}, v{T + 2}, v{X + e}')
    red(T + 2)
    a.e(f'v_mul_f32 v{T + 2}, {fbits(1.0 / 512)}, v{T + 2}')
    for e in range(16): a.e(f'v_sub_f32 v{X + e}, v{X + e}, v{T + 2}')
    a.e(f'v_mul_f32 v{T + 3}, v{X}, v{X}')
    for e in range(1, 16): a.e(f'v_fmac_f32 v{T + 3}, v{X + e}, v{X + e}')
    red(T + 3)
    a.e(f'v_mov_b32 v{T + 1}, {fbits(EPS)}')
    a.e(f'v_fmac_f32 v{T + 1}, {fbits(1.0 / 512)}, v{T + 3}')
    a.e(f'v_rsq_f32 v{T + 3}, v{T + 1}')
    a.e(f'v_lshrrev_b32 v{T}, 5, v0')
    a.e(f'v_lshlrev_b32 v{T}, 3, v{T}')
    a.e(f's_lshl_b32 s88, {srow0}, 3')
    a.e('s_mov_b32 exec_lo, 1')
    a.e('s_mov_b32 exec_hi, 1')
    a.e(f'buffer_store_dwordx2 {v(T + 2, 2)}, v{T}, {srd("ws")}, s88 offen {sc}', 'stst')
    a.e('s_mov_b64 exec, -1')


def k0_kernel(name):
    a = Asm(); end = name + '_end'
    prologue(a, ['x', 'wq', 'w1', 'w3', 'ws'], 256, end)
    a.e('s_lshl_b32 s94, s2, 2')
    a.e(f's_add_u32 s94, s94, s{S_W}')
    a.e('s_lshl_b32 s94, s94, 1')
    row_stats(a, 's94', 4)
    a.wait_all()
    a.e('s_cmp_ge_u32 s2, 94')
    a.e(f's_cbranch_scc1 {end}')
    lab_sum = a.label('k0sum')
    T = 4
    a.e(f'v_lshrrev_b32 v{T}, 5, v0')
    a.e(f's_lshl_b32 s88, s{S_W}, 1')
    a.e(f'v_add_u32 v{T}, s88, v{T}')
    a.e(f'v_and_b32 v{T + 1}, 31, v0')
    for wn, lo, hi, stride, dst in (('wq', 0, 64, 8192, WS_CSQ), ('w1', 64, 72, 1024, WS_CS1), ('w3', 72, 94, 2752, WS_CS3)):
        nx = a.label('k0n')
        if hi < 94:
            a.e(f's_cmp_ge_u32 s2, {hi}')
            a.e(f's_cbranch_scc1 {nx}')
        a.e(f's_sub_u32 s90, s2, {lo}')
        a.e(f's_lshl_b32 s91, s90, 8')
        a.e(f's_add_u32 s91, s91, {dst}')
        a.e(f's_lshl_b32 s90, s90, 7')
        a.e(f's_mov_b32 s92, {64 * stride}')
        a.e(f'v_mul_lo_u32 v{T + 2}, v{T}, s92')
        a.e(f'v_lshl_add_u32 v{T + 2}, v{T + 1}, 2, v{T + 2}')
        for r in range(64):
            a.e(f'buffer_load_dword v{16 + r}, v{T + 2}, {srd(wn)}, s90 offen')
            a.e(f's_add_u32 s90, s90, {stride}')
        a.wait_all()
        if hi < 94: a.e(f's_branch {lab_sum}')
        a.raw(nx + ':')
    a.raw(lab_sum + ':')
    a.e('s_mov_b32 s89, 0xffff0000')
    a.e(f'v_mov_b32 v8, 0'); a.e('v_mov_b32 v9, 0')
    for r in range(64):
        a.e(f'v_lshlrev_b32 v10, 16, v{16 + r}')
        a.e(f'v_and_b32 v11, s89, v{16 + r}')
        a.e('v_pk_add_f32 v[8:9], v[8:9], v[10:11]')
    a.e(f'v_lshlrev_b32 v12, 8, v{T}')
    a.e(f'v_lshl_add_u32 v12, v{T + 1}, 3, v12')
    a.e('ds_write_b64 v12, v[8:9]')
    a.wait_lg0(); a.e('s_barrier')
    a.e(f'v_lshlrev_b32 v12, 3, v{T + 1}')
    for r in range(8): a.e(f'ds_read_b64 {v(16 + 2 * r, 2)}, v12 offset:{r * 256}')
    for r in range(1, 8): a.e(f'v_pk_add_f32 v[16:17], v[16:17], {v(16 + 2 * r, 2)}')
    a.e(f'buffer_store_dwordx2 v[16:17], v12, {srd("ws")}, s91 offen')
    a.wait_all()
    a.raw(end + ':'); a.e('s_endpgm'); a.pad()
    return a
```

```python
import sys
from build_v1 import *
def empty(name):
    a = Asm(); a.e('s_endpgm'); a.pad(); return a
def base():
    return [('k0_kernel', gemms.k0_kernel('k0_kernel'), 256, 4096),
          ('attn_kernel', attn.attn_kernel('attn_kernel'), 256, attn.LDS_ATT),
          ('m2_kernel', gemms.m2_kernel('m2_kernel'), 64, 4 * WCH),
          ('m3a_kernel', gemms.m3a_kernel('m3a_kernel'), 176, 4 * WCH),
          ('op_kernel', gemms.op_kernel('op_kernel'), 256, 4 * WCH),
          ('fin_kernel', gemms.fin_kernel('fin_kernel'), 256, 4 * gemms.F_NS * gemms.F_KS)]
e = ('empty_kernel', empty('empty_kernel'), 256, 0)
b = base()
build(b + [e] * 4, 'p1.s')
build(b + [e] * 8, 'p2.s')
build([e] * 4 + b, 'p3.s')
build(b[:2] + [b[1]] + b[2:], 'p4.s')
build([b[0]] + b, 'p5.s')
```

```python
from common import *

QSLOT = WCH + 2048 + 32768
QS = [0, QSLOT, 2 * QSLOT]
KV_T = 16 * 1088
K_BASE = 2 * QSLOT
K_SLOT = [0, 2 * KV_T]
V_BASE = K_BASE - KV_T
V_SLOT = [2 * KV_T, 0]
LDS_ATT = K_BASE + 3 * KV_T

V_KR, V_VR, V_KD, V_VD, V_L, V_T = 1, 3, 4, 8, 12, 14
ACC = 16
V_WR, V_W1R, V_XR, V_WD, V_XD, V_W1D = 160, 163, 166, 172, 176, 180
V_ST, V_CS, V_TMP = 182, 192, 228
A_A, A_B = 0, 40
A_Q, A_K, A_V = 128, 192, 224
V_O, V_S, V_P = 16, 144, 208
S_SOQ, S_SO1, S_SOX, S_SOX2, S_SOK, S_M = 90, 91, 92, 93, 94, 95
S_MW, S_MW1, S_MX, S_MK = 96, 97, 98, 99
S_C1, S_C2 = 100, 101


def acc(b, nb):
    return ACC + (b * 4 + nb) * 4


def decode_wg(a):
    a.e(f's_and_b32 s{S_X}, s2, 7')
    a.e(f's_lshr_b32 s88, s2, 3')
    a.e(f's_and_b32 s{S_H}, s88, 3')
    a.e(f's_lshl_b32 s89, s{S_X}, 2')
    a.e(f's_add_u32 s{S_H}, s{S_H}, s89')
    a.e(f's_lshr_b32 s{S_RB}, s88, 2')


def qp_setup(a):
    t0, t1 = V_TMP, V_TMP + 1
    gen_w_dma_addr(a, 'nat', 8192, V_WD, t0, t1)
    a.e(f'v_lshrrev_b32 v{t0}, 3, v0')
    a.e(f'v_lshrrev_b32 v{t1}, 4, v0')
    a.e(f'v_xor_b32 v{t1}, v{t1}, v0')
    a.e(f'v_and_b32 v{t1}, 7, v{t1}')
    a.e(f'v_lshlrev_b32 v{t1}, 4, v{t1}')
    a.e(f'v_lshl_add_u32 v{V_XD}, v{t0}, 10, v{t1}')
    a.e(f'v_xor_b32 v{V_XD + 1}, 64, v{V_XD}')
    a.e(f'v_add_u32 v{V_XD + 1}, {8192 - 1024}, v{V_XD + 1}')
    a.e(f'v_add_u32 v{V_XD + 2}, {2 * (8192 - 1024)}, v{V_XD}')
    a.e(f'v_add_u32 v{V_XD + 3}, {2 * (8192 - 1024)}, v{V_XD + 1}')
    a.e(f'v_bfe_u32 v{t0}, v0, 1, 2')
    a.e(f'v_bfe_u32 v{t1}, v0, 4, 1')
    a.e(f'v_lshl_add_u32 v{t0}, v{t1}, 2, v{t0}')
    a.e(f'v_bfe_u32 v{t1}, v0, 3, 1')
    a.e(f'v_lshl_add_u32 v{t0}, v{t1}, 3, v{t0}')
    a.e(f'v_lshrrev_b32 v{t1}, 5, v0')
    a.e(f'v_lshl_add_u32 v{t0}, v{t1}, 4, v{t0}')
    a.e(f's_and_b32 s88, s{S_W}, 1')
    a.e(f's_lshl_b32 s89, s88, 5')
    a.e(f'v_add_u32 v{t0}, s89, v{t0}')
    a.e(f'v_and_b32 v{t1}, 1, v0')
    a.e(f'v_lshlrev_b32 v{t1}, 4, v{t1}')
    a.e(f'v_lshl_add_u32 v{V_W1D}, v{t0}, 10, v{t1}')
    a.e(f's_lshl_b32 s{S_SOQ}, s{S_H}, 8')
    a.e(f's_lshl_b32 s{S_SO1}, s{S_H}, 5')
    a.e(f's_lshl_b32 s{S_SOX}, s{S_RB}, 2')
    a.e(f's_add_u32 s{S_SOX}, s{S_SOX}, s{S_W}')
    a.e(f's_lshl_b32 s{S_SOX}, s{S_SOX}, 16')
    a.e(f's_add_u32 s{S_SOX2}, s{S_SOX}, 32768')
    a.e(f's_mul_i32 s{S_MW}, s{S_W}, 4224')
    a.e(f's_lshl_b32 s{S_MW1}, s88, 10')
    a.e(f's_add_u32 s{S_MW1}, s{S_MW1}, {WCH}')
    a.e(f's_lshl_b32 s{S_MX}, s{S_W}, 13')
    a.e(f's_add_u32 s{S_MX}, s{S_MX}, {WCH + 2048}')


def qp_dma_items(c):
    sl = QS[c % 3]; tag = ('Q', c); it = []
    it.append(f's_add_u32 m0, s{S_MX}, {sl}')
    for t in range(4):
        it.append((f'buffer_load_dwordx4 v{V_XD + t}, {srd("x")}, s{S_SOX} offen offset:{t * 1024} lds', tag))
    it.append(f's_add_u32 m0, s{S_MW}, {sl}')
    for t in range(4):
        it.append((f'buffer_load_dwordx4 v{V_WD + t}, {srd("wq")}, s{S_SOQ} offen offset:{t * BLK} lds', tag))
    it.append(f's_add_u32 m0, s{S_MX}, {sl + 4096}')
    for t in range(4):
        it.append((f'buffer_load_dwordx4 v{V_XD + t}, {srd("x")}, s{S_SOX2} offen offset:{t * 1024} lds', tag))
    it.append(f's_add_u32 m0, s{S_MW1}, {sl}')
    it.append((f'buffer_load_dwordx4 v{V_W1D}, {srd("w1")}, s{S_SO1} offen lds', tag))
    if c < 7:
        it.append(f's_add_u32 s{S_SOQ}, s{S_SOQ}, {64 * 8192}')
        it.append(f's_add_u32 s{S_SO1}, s{S_SO1}, {64 * 1024}')
        it.append(f's_add_u32 s{S_SOX}, s{S_SOX}, 128')
        it.append(f's_add_u32 s{S_SOX2}, s{S_SOX2}, 128')
    return it


def qp_setup_reads(a):
    t0, t1 = V_TMP, V_TMP + 1
    w_lane_read_addr(a, V_WR, t0, t1)
    a.e(f'v_add_u32 v{V_WR + 1}, {QS[1]}, v{V_WR}')
    a.e(f'v_add_u32 v{V_WR + 2}, {QS[2]}, v{V_WR}')
    a.e(f'v_bfe_u32 v{t0}, v0, 2, 3')
    a.e(f'v_lshlrev_b32 v{t0}, 5, v{t0}')
    a.e(f'v_lshrrev_b32 v{t1}, 5, v0')
    a.e(f'v_lshl_add_u32 v{t0}, v{t1}, 9, v{t0}')
    a.e(f'v_and_b32 v{t1}, 3, v0')
    a.e(f'v_lshl_add_u32 v{t0}, v{t1}, 3, v{t0}')
    for s in range(3):
        a.e(f'v_add_u32 v{V_W1R + s}, {QS[s] + WCH}, v{t0}')
    a.e(f'v_and_b32 v{t0}, 15, v0')
    a.e(f'v_lshrrev_b32 v{t1}, 1, v{t0}')
    a.e(f'v_lshlrev_b32 v{t0}, 7, v{t0}')
    a.e(f'v_lshrrev_b32 v{V_XR}, 4, v0')
    a.e(f'v_xor_b32 v{t1}, v{t1}, v{V_XR}')
    a.e(f'v_lshl_add_u32 v{t0}, v{t1}, 4, v{t0}')
    a.e(f'v_add_u32 v{V_XR}, s{S_MX}, v{t0}')
    a.e(f'v_xor_b32 v{V_XR + 1}, 64, v{V_XR}')
    for s in (1, 2):
        a.e(f'v_add_u32 v{V_XR + 2 * s}, {QS[s]}, v{V_XR}')
        a.e(f'v_add_u32 v{V_XR + 2 * s + 1}, {QS[s]}, v{V_XR + 1}')


def core_setup(a):
    t0, t1 = V_TMP, V_TMP + 1
    a.e(f'v_lshrrev_b32 v{t0}, 4, v0')
    a.e(f'v_and_b32 v{t1}, 15, v0')
    a.e(f's_lshl_b32 s88, s{S_W}, 12')
    a.e(f's_add_u32 s88, s88, {1536 * 256}')
    a.e(f'v_lshlrev_b32 v{V_VD}, 10, v{t0}')
    a.e(f'v_lshl_add_u32 v{V_VD}, v{t1}, 4, v{V_VD}')
    a.e(f'v_add_u32 v{V_VD}, s88, v{V_VD}')
    a.e(f'v_xor_b32 v{t1}, v{t1}, v{t0}')
    a.e(f'v_lshlrev_b32 v{t0}, 8, v{t0}')
    a.e(f'v_lshl_add_u32 v{t0}, v{t1}, 4, v{t0}')
    a.e(f'v_add_u32 v{V_KD}, s88, v{t0}')
    for t in range(1, 4):
        a.e(f'v_subrev_u32 v{V_KD + t}, {t * 64}, v{V_KD}')
        a.e(f'v_subrev_u32 v{V_VD + t}, {t * 832}, v{V_VD}')
    a.e(f's_lshl_b32 s{S_SOK}, s{S_H}, 19')
    a.e(f's_mul_i32 s{S_MK}, s{S_W}, 4352')
    a.e(f'v_bfe_u32 v{t0}, v0, 2, 3')
    a.e(f'v_mul_u32_u24 v{t0}, 1088, v{t0}')
    a.e(f'v_and_b32 v{t1}, 3, v0')
    a.e(f'v_lshl_add_u32 v{t0}, v{t1}, 8, v{t0}')
    a.e(f'v_lshrrev_b32 v{V_KR}, 5, v0')
    a.e(f'v_xor_b32 v{t1}, v{t1}, v{V_KR}')
    a.e(f'v_lshlrev_b32 v{t1}, 4, v{t1}')
    a.e(f'v_xor_b32 v{V_KR + 1}, 32, v{t1}')
    a.e(f'v_add3_u32 v{V_KR}, v{t0}, v{t1}, s89') if False else None
    a.e(f's_mov_b32 s89, {K_BASE}')
    a.e(f'v_add3_u32 v{V_KR}, v{t0}, v{t1}, s89')
    a.e(f'v_add3_u32 v{V_KR + 1}, v{t0}, v{V_KR + 1}, s89')
    a.e(f'v_bfe_u32 v{t0}, v0, 2, 2')
    a.e(f'v_mul_u32_u24 v{t0}, 1088, v{t0}')
    a.e(f'v_lshrrev_b32 v{t1}, 5, v0')
    a.e(f'v_lshl_add_u32 v{t0}, v{t1}, 8, v{t0}')
    a.e(f'v_bfe_u32 v{t1}, v0, 4, 1')
    a.e(f'v_lshl_add_u32 v{t0}, v{t1}, 5, v{t0}')
    a.e(f'v_and_b32 v{t1}, 3, v0')
    a.e(f'v_lshl_add_u32 v{t0}, v{t1}, 3, v{t0}')
    a.e(f'v_add_u32 v{V_VR}, {V_BASE}, v{t0}')


def k_dma_items(T):
    it = [f's_add_u32 m0, s{S_MK}, {K_BASE + K_SLOT[T & 1]}', f's_add_u32 s{S_M}, s{S_SOK}, {T * 16384}']
    for t in range(4):
        it.append((f'buffer_load_dwordx4 v{V_KD + t}, {srd("k")}, s{S_M} offen offset:{t * 1088} lds', ('K', T)))
    return it


def v_dma_items(T):
    it = [f's_add_u32 m0, s{S_MK}, {V_BASE + V_SLOT[T & 1]}', f's_add_u32 s{S_M}, s{S_SOK}, {T * 16384}']
    for t in range(4):
        it.append((f'buffer_load_dwordx4 v{V_VD + t}, {srd("v")}, s{S_M} offen offset:{t * 1088} lds', ('V', T)))
    return it


def qp_a_reads(kappa, b):
    c, ks = kappa >> 1, kappa & 1; sl = c % 3
    if b < 8:
        return [f'ds_read_b64_tr_b16 {ar(A_A + 4 * b + 2 * u, 2)}, v{V_WR + sl} offset:{ks * KS_BYTES + u * 256 + b * 32}' for u in (0, 1)]
    return [f'ds_read_b64_tr_b16 {ar(A_A + 32 + 2 * u, 2)}, v{V_W1R + sl} offset:{ks * 1024 + u * 256}' for u in (0, 1)]


def qp_b_read(kappa, nb):
    c, ks = kappa >> 1, kappa & 1; sl = c % 3
    return f'ds_read_b128 {ar(A_B + 16 * ks + 4 * nb, 4)}, v{V_XR + 2 * sl + ks} offset:{nb * 2048}'


def k_read(it, s):
    T, kh = it >> 1, it & 1
    return f'ds_read_b128 {ar(A_K + 4 * s, 4)}, v{V_KR + (s & 1)} offset:{K_SLOT[T & 1] + kh * 8704 + (s >> 1) * 64}'


def v_reads(it, sp, db):
    T, kh = it >> 1, it & 1
    return [f'ds_read_b64_tr_b16 {ar(A_V + 16 * sp + 4 * db + 2 * u, 2)}, v{V_VR} offset:{V_SLOT[T & 1] + (2 * kh + sp) * 4352 + u * 512 + db * 64}' for u in (0, 1)]


def barrier(*tags):
    def f(a):
        a.wait_tag(*tags, lg0=True)
        a.e('s_barrier')
    return f


def wait_lg(n):
    def f(a):
        if len(a.lg) > n: a._wait(None, n)
    return f


def qp_main(a, extra_fill=None):
    a.wait_tag(('Q', 0)); a.e('s_barrier')
    stamp(a, 2)
    for nb in range(4): a.e(qp_b_read(0, nb))
    for b in range(9):
        for r in qp_a_reads(0, b): a.e(r)
    for kappa in range(16):
        c, ks = kappa >> 1, kappa & 1
        mf = []
        for b in range(9):
            for nb in range(4):
                d = v(acc(b, nb), 4)
                mf.append(f'v_mfma_f32_16x16x32_bf16 {d}, {ar(A_A + 4 * b, 4)}, {ar(A_B + 16 * ks + 4 * nb, 4)}, {d if kappa else 0}')
        fill = {}; pre = {0: [wait_lg(2)]}
        nxt = kappa + 1
        first = 3
        if ks == 1:
            first = 7
            if c < 7: fill.setdefault(7, []).append(barrier(('Q', c + 1)))
            else: fill.setdefault(7, []).append(barrier(('K', 0)))
        if nxt < 16:
            for b in range(9):
                pos = max(4 * b + 3, first + (b if 4 * b + 3 <= first else 0))
                rr = qp_a_reads(nxt, b)
                fill.setdefault(pos, []).append(rr[0])
                fill.setdefault(min(pos + 1, 35), []).append(rr[1])
            for nb in range(4):
                fill.setdefault(first + 2 + 4 * nb + (0 if first == 3 else 1), []).append(qp_b_read(nxt, nb))
        else:
            for s in range(8): fill.setdefault(8 + 2 * s, []).append(k_read(0, s))
        items = []
        if ks == 1 and c + 3 <= 7: items = qp_dma_items(c + 3)
        if ks == 1 and c == 5: items = k_dma_items(0) + v_dma_items(0) + k_dma_items(1)
        if items: spread(fill, items, 9, 36)
        if extra_fill and kappa in extra_fill: spread(fill, extra_fill[kappa], 9, 36)
        interleave(a, mf, fill, pre)


def stats_loads(tag='st'):
    t0, t1 = V_TMP + 2, V_TMP + 3
    it = [f'v_and_b32 v{t0}, 15, v0', f'v_lshlrev_b32 v{t0}, 3, v{t0}',
          f's_lshl_b32 s88, s{S_RB}, 2', f's_add_u32 s88, s88, s{S_W}', f's_lshl_b32 s88, s88, 9']
    for nb in range(4):
        it.append((f'buffer_load_dwordx2 {v(V_ST + 2 * nb, 2)}, v{t0}, {srd("ws")}, s88 offen offset:{nb * 128}', tag))
    it += [f'v_lshrrev_b32 v{t1}, 4, v0', f'v_lshlrev_b32 v{t1}, 4, v{t1}',
           f's_lshl_b32 s89, s{S_H}, 9', f's_add_u32 s89, s89, {WS_CSQ}']
    for b in range(8):
        it.append((f'buffer_load_dwordx4 {v(V_CS + 4 * b, 4)}, v{t1}, {srd("ws")}, s89 offen offset:{b * 64}', tag))
    it += [f's_lshl_b32 s88, s{S_H}, 6', f's_add_u32 s88, s88, {WS_CS1}']
    it.append((f'buffer_load_dwordx4 {v(V_CS + 32, 4)}, v{t1}, {srd("ws")}, s88 offen', tag))
    return it


QSCALE = 1.4426950408889634 * 128 ** -0.5
EPS = 1e-5


def qp_epilogue(a, sc=''):
    T = V_TMP
    a.e(f's_mov_b32 s88, {fbits(QSCALE)}')
    a.e(f's_mov_b32 s89, {fbits(-EPS)}')
    a.e(f'v_mov_b32 v{T}, {fbits(1.0 + EPS)}')
    for nb in range(4):
        r = V_ST + 2 * nb + 1
        a.e(f'v_mul_f32 v{T + 12 + nb}, v{r}, v{r}')
        a.e(f'v_fma_f32 v{T + 12 + nb}, v{T + 12 + nb}, s89, v{T}')
        a.e(f'v_rsq_f32 v{T + 12 + nb}, v{T + 12 + nb}')
        a.e(f'v_mul_f32 v{T + 8 + nb}, s88, v{r}')
    for nb in range(4):
        a.e(f'v_mul_f32 v{T + 12 + nb}, v{T + 12 + nb}, v{V_ST + 2 * nb + 1}')

    def corr(b, nb, scale):
        d = acc(b, nb); m = V_ST + 2 * nb
        sp = scale & ~1; osel = scale & 1
        o = []
        for p in (0, 2):
            o.append(f'v_pk_fma_f32 {v(d + p, 2)}, {v(m, 2)}, {v(V_CS + 4 * b + p, 2)}, {v(d + p, 2)} op_sel_hi:[0,1,1] neg_lo:[1,0,0] neg_hi:[1,0,0]')
        for p in (0, 2):
            o.append(f'v_pk_mul_f32 {v(d + p, 2)}, {v(d + p, 2)}, {v(sp, 2)} op_sel:[0,{osel}] op_sel_hi:[1,{osel}]')
        return o
    a.e(f's_mov_b32 s{S_C2}, {fbits(GELU_C2)}')
    a.e(f'v_mov_b32 v{T + 16}, {fbits(GELU_C1)}')
    emit_staged(a, [corr(8, nb, T + 12 + nb) for nb in range(4)])
    for half in range(2):
        emit_staged(a, [gelu_ops(acc(8, 0) + 8 * half + e, T + e, T + 16, S_C2) for e in range(8)])
    H = T
    for nb in range(4):
        d = acc(8, nb)
        a.e(f'v_cvt_pk_bf16_f32 v{H + 2 * nb}, v{d}, v{d + 1}')
        a.e(f'v_cvt_pk_bf16_f32 v{H + 2 * nb + 1}, v{d + 2}, v{d + 3}')
    t0, t1 = T + 17, T + 18
    a.e(f'v_bfe_u32 v{t0}, v0, 4, 1')
    a.e(f'v_lshlrev_b32 v{t0}, 14, v{t0}')
    a.e(f'v_lshrrev_b32 v{t1}, 5, v0')
    a.e(f'v_lshl_add_u32 v{t0}, v{t1}, 8, v{t0}')
    a.e(f'v_and_b32 v{t1}, 15, v0')
    a.e(f'v_lshl_add_u32 v{t0}, v{t1}, 4, v{t0}')
    a.e(f's_lshl_b32 s88, s{S_RB}, 2')
    a.e(f's_add_u32 s88, s88, s{S_W}')
    a.e(f's_lshl_b32 s88, s88, 16')
    a.e(f's_lshl_b32 s89, s{S_H}, 9')
    a.e(f's_add_u32 s88, s88, s89')
    a.e(f's_add_u32 s89, s88, 32768')
    for j in range(2):
        for r in range(2):
            a.e(f'v_permlane16_swap_b32 v{H + 4 * j + r}, v{H + 4 * j + 2 + r}')
    for j in range(2):
        a.e(f'buffer_store_dwordx4 {v(H + 4 * j, 4)}, v{t0}, {srd("h")}, s{88 + j} offen {sc}', 'hst')
    for Qb in range(2):
        for b0 in range(0, 8, 2):
            emit_staged(a, [corr(b, 2 * Qb + q, T + 8 + 2 * Qb + q) for b in (b0, b0 + 1) for q in (0, 1)])
            for b in (b0, b0 + 1):
                for q in (0, 1):
                    d = acc(b, 2 * Qb + q); R = acc(b, 2 * Qb)
                    if q == 0:
                        a.e(f'v_cvt_pk_bf16_f32 v{R}, v{d}, v{d + 1}')
                        a.e(f'v_cvt_pk_bf16_f32 v{R + 1}, v{d + 2}, v{d + 3}')
                    else:
                        a.e(f'v_cvt_pk_bf16_f32 v{R + 2}, v{d}, v{d + 1}')
                        a.e(f'v_cvt_pk_bf16_f32 v{R + 3}, v{d + 2}, v{d + 3}')
            for b in (b0, b0 + 1):
                R = acc(b, 2 * Qb)
                for r in range(2): a.e(f'v_permlane16_swap_b32 v{R + r}, v{R + 2 + r}')
            for b in (b0, b0 + 1):
                R = acc(b, 2 * Qb)
                for r in range(4): a.e(f'v_accvgpr_write_b32 a{A_Q + (Qb * 8 + b) * 4 + r}, v{R + r}')


def S(p, Qb): return V_S + 32 * p + 16 * Qb
def P(p, Qb): return V_P + 16 * p + 8 * Qb
def O(db, Qb): return V_O + (db * 2 + Qb) * 16


def softmax_items(i):
    p = i & 1; out = []
    for e in range(32):
        Qb, r = e >> 4, e & 15
        x = S(p, Qb) + r
        ex = f'v_exp_f32 v{x}, v{x}'
        ad = f'v_add_f32 v{V_L + Qb}, v{V_L + Qb}, v{x}' if (i or r) else f'v_mov_b32 v{V_L + Qb}, v{x}'
        cv = f'v_cvt_pk_bf16_f32 v{P(p, Qb) + (r >> 1)}, v{x - 1}, v{x}' if r & 1 else None
        out.append((ex, ad, cv))
    seq = []
    for e in range(33):
        g = []
        if e < 32: g.append(out[e][0])
        if e >= 1:
            g.append(out[e - 1][1])
            if out[e - 1][2]: g.append(out[e - 1][2])
        seq.append(g)
    return seq


def core(a, tail_items=None):
    def qk(i):
        p = i & 1; l = []
        for s in range(8):
            for Qb in range(2):
                d = v(S(p, Qb), 16)
                l.append(f'v_mfma_f32_32x32x16_bf16 {d}, {ar(A_K + 4 * s, 4)}, {ar(A_Q + (Qb * 8 + s) * 4, 4)}, {d if s else 0}')
        return l

    def pv(i):
        p = i & 1; l = []
        for sp in range(2):
            for db in range(4):
                for Qb in range(2):
                    d = v(O(db, Qb), 16)
                    l.append(f'v_mfma_f32_32x32x16_bf16 {d}, {ar(A_V + 16 * sp + 4 * db, 4)}, {v(P(p, Qb) + 4 * sp, 4)}, {d if (i or sp) else 0}')
        return l

    for i in range(-1, 17):
        mf = []; mem = {}; val = {}; pre = {}
        hasqk = i + 1 <= 15; haspv = i - 1 >= 0
        if hasqk: mf += qk(i + 1)
        npv0 = len(mf)
        if haspv: mf += pv(i - 1)
        n = len(mf)
        dma = []
        if i >= 0 and i % 2 == 0 and i <= 14:
            j = i // 2
            tags = [('V', j)] + ([('K', j + 1)] if j + 1 <= 7 else [])
            bpos = 15 if i > 0 else 1
            mem.setdefault(bpos, []).append(barrier(*tags))
            if j + 2 <= 7: dma += k_dma_items(j + 2)
            if j + 1 <= 7: dma += v_dma_items(j + 1)
        if i + 2 <= 15:
            if haspv:
                for s in range(8): mem.setdefault(npv0 + s, []).append(k_read(i + 2, s))
            else:
                for s in range(8): mem.setdefault(2 * s + 1, []).append(k_read(i + 2, s))
        if hasqk and haspv:
            rs = [r for sp in range(2) for db in range(4) for r in v_reads(i - 1, sp, db)]
            spread(mem, rs, 0, 13)
            if i % 2 == 1: pre[npv0] = [wait_lg(0)]
        if i in (14, 15):
            for sp in range(2):
                for db in range(4):
                    for r in v_reads(i, sp, db): mem.setdefault(npv0 + 8 * sp + 2 * db + 1, []).append(r)
        if hasqk and i >= 1: pre[0] = [wait_lg(0)]
        if dma:
            if i == 0: spread(mem, dma, 2, 16)
            else: spread(mem, dma, npv0 + 8, n)
        if tail_items and i in tail_items: spread(mem, tail_items[i], 0, n)
        if 0 <= i <= 15:
            seq = softmax_items(i)
            if n == 32:
                for e in range(32): val.setdefault(e, []).extend(seq[e])
                val[31].extend(seq[32])
            else:
                for e in range(32): val.setdefault(e // 2, []).extend(seq[e])
                val[15].extend(seq[32])
        fill = {k: mem.get(k, []) + val.get(k, []) for k in range(n)}
        interleave(a, mf, fill, pre)


def o_epilogue(a, store=True, sc=''):
    T = V_S
    for Qb in range(2):
        a.e(f'v_mov_b32 v{T + Qb}, v{V_L + Qb}')
    for Qb in range(2):
        a.e(f'v_permlane32_swap_b32 v{T + Qb}, v{V_L + Qb}')
    for Qb in range(2):
        a.e(f'v_add_f32 v{V_L + Qb}, v{V_L + Qb}, v{T + Qb}')
    for Qb in range(2):
        a.e(f'v_rcp_f32 v{T + Qb}, v{V_L + Qb}')
    t0, t1 = T + 2, T + 3
    a.e(f'v_bfe_u32 v{t0}, v0, 4, 1')
    a.e(f'v_lshlrev_b32 v{t0}, 17, v{t0}')
    a.e(f'v_lshrrev_b32 v{t1}, 5, v0')
    a.e(f'v_lshl_add_u32 v{t0}, v{t1}, 9, v{t0}')
    a.e(f'v_and_b32 v{t1}, 15, v0')
    a.e(f'v_lshl_add_u32 v{t0}, v{t1}, 4, v{t0}')
    a.e(f's_lshl_b32 s88, s{S_RB}, 2')
    a.e(f's_add_u32 s88, s88, s{S_W}')
    a.e(f's_lshl_b32 s88, s88, 19')
    a.e(f's_lshl_b32 s89, s{S_H}, 12')
    a.e(f's_add_u32 s88, s88, s89')
    a.e(f's_add_u32 s88, s88, {WS_O}')
    a.e(f's_add_u32 s89, s88, 262144')
    for Qb in range(2):
        for db in range(4):
            d = O(db, Qb)
            for p in range(0, 16, 2):
                a.e(f'v_pk_mul_f32 {v(d + p, 2)}, {v(d + p, 2)}, {v(T, 2)} op_sel:[0,{Qb}] op_sel_hi:[1,{Qb}]')
            for p in range(8):
                a.e(f'v_cvt_pk_bf16_f32 v{d + p}, v{d + 2 * p}, v{d + 2 * p + 1}')
            if store:
                for t in range(2):
                    a.e(f'buffer_store_dwordx4 {v(d + 4 * t, 4)}, v{t0}, {srd("ws")}, s{88 + Qb} offen offset:{db * 1024 + t * 256} {sc}', 'ost')


def attn_kernel(name, sc=''):
    a = Asm()
    end = name + '_end'
    prologue(a, ['x', 'wq', 'w1', 'k', 'v', 'ws', 'h'], 256, end)
    decode_wg(a)
    qp_setup(a)
    for c in range(3):
        for it in qp_dma_items(c): put(a, it)
    qp_setup_reads(a)
    core_setup(a)
    stamp(a, 1)
    qp_main(a, {12: stats_loads()})
    stamp(a, 3)
    qp_epilogue(a, sc)
    stamp(a, 4)
    core(a)
    stamp(a, 5)
    o_epilogue(a, True, sc)
    stamp(a, 6)
    a.wait_all()
    stamp(a, 7)
    stamp_flush(a)
    a.raw(end + ':')
    a.e('s_endpgm')
    a.pad()
    return a
```

```python
from asmlib import *

WS_STATS = 0x0
WS_CSQ = 0x4000
WS_CS1 = 0x8000
WS_CS3 = 0x9000
WS_ST1 = 0x10000
WS_FLAG = 0x20000
WS_H = 0x200000
WS_X1 = 0x400000
WS_H3 = 0x600000
WS_O = 0x1000000
WS_PART = 0x2000000
WS_SIZE = 0x10000000

SRD = dict(x=36, k=40, v=44, wq=48, wo=52, w1=56, w2=60, w3=64, w4=68, out=72, ws=76, h=80, dbg=84)
PTR = dict(x=8, k=10, v=12, wq=14, wo=16, w1=20, w2=22, w3=24, w4=26, out=28, dbg=30, ws=32)
SIZE = dict(x=2 << 20, k=16 << 20, v=16 << 20, wq=4 << 20, wo=4 << 20, w1=512 << 10, w2=512 << 10,
            w3=512 * 1376 * 2, w4=1376 * 512 * 2, out=2 << 20, ws=WS_SIZE, dbg=256, h=2 << 20)

S_W, S_RB, S_H, S_X = 3, 4, 5, 6
BIAS = 128
BIASED = ('wo', 'w2', 'w4')


def srd(n):
    return sr(SRD[n], 4)


def prologue(a, need, nwg, endlabel):
    a.e(f's_cmp_ge_u32 s2, {nwg}')
    a.e(f's_cbranch_scc1 {endlabel}')
    stamp(a, 0)
    a.e('s_load_dwordx16 s[8:23], s[0:1], 0')
    a.e('s_load_dwordx8 s[24:31], s[0:1], 64')
    a.e('s_load_dwordx2 s[32:33], s[0:1], 96')
    a.e('v_lshrrev_b32 v1, 6, v0')
    a.e('v_and_b32 v0, 63, v0')
    a.e(f'v_readfirstlane_b32 s{S_W}, v1')
    a.wait_all(vm=False)
    for n in need:
        d = SRD[n]
        if n == 'h':
            a.e(f's_add_u32 s{d}, s32, {WS_H}')
            a.e(f's_addc_u32 s{d + 1}, s33, 0')
            a.e(f's_and_b32 s{d + 1}, s{d + 1}, 0xffff')
        elif n in BIASED:
            p = PTR[n]
            a.e(f's_sub_u32 s{d}, s{p}, {BIAS}')
            a.e(f's_subb_u32 s{d + 1}, s{p + 1}, 0')
            a.e(f's_and_b32 s{d + 1}, s{d + 1}, 0xffff')
        else:
            p = PTR[n]
            a.e(f's_mov_b32 s{d}, s{p}')
            a.e(f's_and_b32 s{d + 1}, s{p + 1}, 0xffff')
        a.e(f's_mov_b32 s{d + 2}, {SIZE[n] + (BIAS if n in BIASED else 0)}')
        a.e(f's_mov_b32 s{d + 3}, 0x20000')


def fbits(x):
    import struct
    return '0x%08x' % struct.unpack('<I', struct.pack('<f', x))[0]


BLK = 1056
KS_BYTES = 8 * BLK
WCH = 2 * KS_BYTES


def w_row(order, i, u, g0, g1):
    if order == 'nat': return i + 4 * u + 8 * g0 + 16 * g1
    if order == 'd16': return i + 4 * g0 + 8 * g1 + 16 * u
    if order == 'd32': return i + 4 * g1 + 8 * u + 16 * g0
    raise ValueError


def w_row_coef(order):
    return w_row(order, 0, 1, 0, 0), w_row(order, 0, 0, 1, 0), w_row(order, 0, 0, 0, 1)


def gen_w_dma_addr(a, order, stride, vdst, t0, t1):
    cu, cg0, cg1 = w_row_coef(order)
    a.e(f'v_bfe_u32 v{t0}, v0, 4, 1')
    a.e(f'v_mul_u32_u24 v{t0}, {cu}, v{t0}')
    a.e(f'v_lshrrev_b32 v{t1}, 5, v0')
    a.e(f'v_mul_u32_u24 v{t1}, {cg1}, v{t1}')
    a.e(f'v_add_u32 v{t0}, v{t0}, v{t1}')
    a.e(f's_and_b32 s88, s{S_W}, 1')
    a.e(f's_mul_i32 s88, s88, {cg0}')
    a.e(f's_lshr_b32 s89, s{S_W}, 1')
    a.e(f's_lshl_b32 s89, s89, 5')
    a.e(f's_add_u32 s88, s88, s89')
    a.e(f'v_add_u32 v{t0}, s88, v{t0}')
    a.e(f's_mov_b32 s89, {stride}')
    a.e(f'v_mul_lo_u32 v{t0}, v{t0}, s89')
    a.e(f'v_and_b32 v{t1}, 15, v0')
    a.e(f'v_lshl_add_u32 v{vdst}, v{t1}, 4, v{t0}')
    if stride < BLK:
        a.e(f'v_add_u32 v{vdst}, {BIAS}, v{vdst}')
    for t in range(1, 4):
        d = t * (stride - BLK)
        a.e(f'v_add_u32 v{vdst + t}, {d}, v{vdst}' if d >= 0 else f'v_subrev_u32 v{vdst + t}, {-d}, v{vdst}')


def w_lane_read_addr(a, vdst, t0, t1, base=0):
    a.e(f'v_bfe_u32 v{t0}, v0, 2, 3')
    a.e(f'v_mul_u32_u24 v{t0}, {BLK}, v{t0}')
    a.e(f'v_lshrrev_b32 v{t1}, 5, v0')
    a.e(f'v_lshl_add_u32 v{t0}, v{t1}, 9, v{t0}')
    a.e(f'v_and_b32 v{t1}, 3, v0')
    a.e(f'v_lshl_add_u32 v{vdst}, v{t1}, 3, v{t0}')
    if base: a.e(f'v_add_u32 v{vdst}, {base}, v{vdst}')


GELU_C1 = -2.0 * 0.7978845608028654 * 1.4426950408889634
GELU_C2 = GELU_C1 * 0.044715


def gelu_ops(x, t, sc1, sc2):
    return [f'v_mul_f32 v{t}, v{x}, v{x}',
            f'v_fma_f32 v{t}, v{t}, s{sc2}, v{sc1}',
            f'v_mul_f32 v{t}, v{t}, v{x}',
            f'v_exp_f32 v{t}, v{t}',
            f'v_add_f32 v{t}, 1.0, v{t}',
            f'v_rcp_f32 v{t}, v{t}',
            f'v_mul_f32 v{x}, v{x}, v{t}']


def emit_staged(a, chains):
    n = max(len(c) for c in chains)
    for s in range(n):
        for c in chains:
            if s < len(c): a.e(c[s])


WS_TS = 0x80000
STAMPS = {'on': False, 'kid': 0}


def stamp(a, idx):
    if not STAMPS['on']: return
    a.e('s_memrealtime s[34:35]')
    a.wait_all(vm=False)
    a.e(f'v_writelane_b32 v254, s34, {idx}')
    a.e('s_memtime s[34:35]')
    a.wait_all(vm=False)
    a.e(f'v_writelane_b32 v255, s34, {idx}')


def stamp_flush(a):
    if not STAMPS['on']: return
    a.e(f's_lshl_b32 s34, s2, 2')
    a.e(f's_add_u32 s34, s34, s{S_W}')
    a.e(f's_lshl_b32 s34, s34, 7')
    a.e(f's_add_u32 s34, s34, {WS_TS + STAMPS["kid"] * 131072}')
    a.e('v_lshlrev_b32 v253, 3, v0')
    a.e('s_mov_b64 exec, 0xffff')
    a.e(f'buffer_store_dwordx2 v[254:255], v253, {srd("ws")}, s34 offen')
    a.e('s_mov_b64 exec, -1')
    a.wait_all()
    STAMPS['kid'] += 1
```

```python
from common import *
from attn import barrier, wait_lg, decode_wg, EPS

S_SOW, S_MW, S_CT, S_RT = 90, 91, 92, 93
S_C2 = 101


def w_dma_items(wname, c, slot_base, vwd, stride, last):
    it = [f's_add_u32 m0, s{S_MW}, {slot_base}']
    for t in range(4):
        it.append((f'buffer_load_dwordx4 v{vwd + t}, {srd(wname)}, s{S_SOW} offen offset:{t * BLK} lds', ('W', c)))
    if not last: it.append(f's_add_u32 s{S_SOW}, s{S_SOW}, {64 * stride}')
    return it


def gemm_main(a, NB, accf, areg, bfrag, vwr, slots, wname, vwd, stride, npre, extra=None, nch=8):
    ns = len(slots)

    def a_reads(kappa, b):
        c, ks = kappa >> 1, kappa & 1
        reg, off = vwr(c % ns)
        return [f'ds_read_b64_tr_b16 {areg(4 * b + 2 * u, 2)}, v{reg} offset:{off + ks * KS_BYTES + u * 256 + b * 32}' for u in (0, 1)]
    stamp(a, 1)
    a.wait_tag(('W', 0)); a.e('s_barrier')
    stamp(a, 2)
    for b in range(8):
        for r in a_reads(0, b): a.e(r)
    nk = 2 * nch
    G = NB
    for kappa in range(nk):
        c, ks = kappa >> 1, kappa & 1
        mf = []
        for b in range(8):
            for nb in range(NB):
                d = accf(b, nb)
                mf.append(f'v_mfma_f32_16x16x32_bf16 {d}, {areg(4 * b, 4)}, {bfrag(kappa, nb)}, {d if kappa else 0}')
        n = len(mf)
        fill = {}; pre = {0: [wait_lg(2)]}
        first = G - 1
        if ks == 1 and c + 1 < nch:
            first = 2 * G - 1 if G == 4 else 3 * G - 1
            fill.setdefault(first, []).append(barrier(('W', c + 1)))
        if kappa + 1 < nk:
            q = [(max(G * b + G - 1, first), r) for b in range(8) for r in a_reads(kappa + 1, b)]
            pos = 0; cnt = 0; cap = 1 if G == 4 else 2
            for p, r in q:
                if p > pos: pos = p; cnt = 0
                if cnt >= cap and pos < n - 1: pos += 1; cnt = 0
                fill.setdefault(pos, []).append(r); cnt += 1
        if ks == 1 and c + npre < nch:
            cc = c + npre
            assert cc % ns == c % ns or npre < ns
            spread(fill, w_dma_items(wname, cc, slots[cc % ns], vwd, stride, cc == nch - 1), first + 1, n)
        if extra and kappa in extra: spread(fill, extra[kappa], 1, n)
        interleave(a, mf, fill, pre)
    stamp(a, 3)


def tile_decode_128(a, nct):
    a.e(f's_and_b32 s{S_X}, s2, 7')
    a.e(f's_lshr_b32 s88, s2, 3')
    a.e(f's_cmp_ge_u32 s88, {nct}')
    a.e(f's_cselect_b32 s89, 1, 0')
    a.e(f's_cselect_b32 s{S_CT}, {nct}, 0')
    a.e(f's_sub_u32 s{S_CT}, s88, s{S_CT}')
    a.e(f's_lshl_b32 s{S_RT}, s{S_X}, 1')
    a.e(f's_add_u32 s{S_RT}, s{S_RT}, s89')


G_ACC, G_WR, G_WD, G_BA, G_T, G_X, G_CS, G_ST = 16, 1, 4, 8, 80, 96, 128, 160
GA_A, GA_B = 128, 0
G_SLOTS = [i * WCH for i in range(4)]


def g_acc(b, nb): return G_ACC + (b * 2 + nb) * 4


def lane_piece(a, vdst, t, rowstride16):
    a.e(f'v_lshlrev_b32 v{vdst}, 4, v0')


def g128_common(a, wname, order, stride):
    t0, t1 = G_T, G_T + 1
    gen_w_dma_addr(a, order, stride, G_WD, t0, t1)
    a.e(f's_lshl_b32 s{S_SOW}, s{S_CT}, 8')
    a.e(f's_mul_i32 s{S_MW}, s{S_W}, 4224')
    for c in range(4):
        for it in w_dma_items(wname, c, G_SLOTS[c], G_WD, stride, False): put(a, it)
    w_lane_read_addr(a, G_WR, t0, t1)
    a.e(f'v_add_u32 v{G_WR + 1}, {2 * WCH}, v{G_WR}')


def g_vwr(slot): return (G_WR + (slot >> 1), (slot & 1) * WCH)


def m2_kernel(name, sc=''):
    a = Asm(); end = name + '_end'
    prologue(a, ['x', 'w2', 'ws', 'h'], 64, end)
    tile_decode_128(a, 4)
    t0, t1 = G_T, G_T + 1
    a.e(f's_lshl_b32 s94, s{S_RT}, 2')
    a.e(f's_add_u32 s94, s94, s{S_W}')
    a.e(f's_lshl_b32 s94, s94, 5')
    a.e(f'v_and_b32 v{t0}, 15, v0')
    a.e(f'v_add_u32 v{t0}, s94, v{t0}')
    a.e(f'v_lshrrev_b32 v{t1}, 4, v0')
    a.e(f'v_lshlrev_b32 v{t1}, 8, v{t1}')
    a.e(f's_mov_b32 s95, 2048')
    a.e(f'v_mov_b32 v{G_T + 4}, 0x40000000')
    for grp, dlt in enumerate((-1, 1, -2, 2)):
        for nb in range(2):
            r = G_T + 2; o = G_BA + grp * 2 + nb
            a.e(f'v_add_u32 v{r}, {16 * nb + dlt}, v{t0}')
            a.e(f'v_cmp_gt_u32 vcc, s95, v{r}')
            a.e(f'v_lshrrev_b32 v{o}, 4, v{r}')
            a.e(f'v_lshl_add_u32 v{o}, v{o}, 14, v{t1}')
            a.e(f'v_and_b32 v{r}, 15, v{r}')
            a.e(f'v_lshl_add_u32 v{o}, v{r}, 4, v{o}')
            a.e(f'v_add_u32 v{o}, {grp * 4096}, v{o}')
            a.e(f'v_cndmask_b32 v{o}, v{G_T + 4}, v{o}, vcc')
    for kappa in range(16):
        for nb in range(2):
            a.e(f'buffer_load_dwordx4 {ar(GA_B + (kappa * 2 + nb) * 4, 4)}, v{G_BA + (kappa >> 2) * 2 + nb}, {srd("h")}, 0 offen offset:{(kappa & 3) * 1024} {sc}')
        if kappa == 1: g128_common(a, 'w2', 'nat', 1024)
    a.e(f'v_and_b32 v{t0}, 15, v0')
    a.e(f'v_lshrrev_b32 v{t1}, 4, v0')
    a.e(f'v_lshlrev_b32 v{t1}, 3, v{t1}')
    a.e(f'v_lshl_add_u32 v{G_T + 2}, v{t0}, 10, v{t1}')
    a.e(f'v_lshlrev_b32 v{G_T + 3}, 3, v{t0}')
    a.e(f's_lshl_b32 s96, s94, 10')
    a.e(f's_lshl_b32 s97, s{S_CT}, 8')
    a.e(f's_add_u32 s96, s96, s97')
    a.e(f's_add_u32 s97, s96, 16384')
    a.e(f's_lshl_b32 s98, s94, 3')
    ex = []
    for nb in range(2):
        ex.append(f'buffer_load_dwordx2 {v(G_ST + 2 * nb, 2)}, v{G_T + 3}, {srd("ws")}, s98 offen offset:{nb * 128} {sc}')
        for b in range(8):
            ex.append(f'buffer_load_dwordx2 {v(G_X + (b * 2 + nb) * 2, 2)}, v{G_T + 2}, {srd("x")}, s{96 + nb} offen offset:{b * 32}')
    gemm_main(a, 2, lambda b, nb: v(g_acc(b, nb), 4), lambda o, n: ar(GA_A + o, n),
              lambda k, nb: ar(GA_B + (k * 2 + nb) * 4, 4), g_vwr, G_SLOTS, 'w2', G_WD, 1024, 4,
              extra={8: ex[:9], 10: ex[9:]})
    SUM = G_T + 6
    a.e(f's_mov_b32 s99, 0xffff0000')
    for nb in range(2):
        m, rs = G_ST + 2 * nb, G_ST + 2 * nb + 1
        a.e(f'v_mul_f32 v{m}, v{m}, v{rs}')
        for b in range(8):
            d = g_acc(b, nb); x = G_X + (b * 2 + nb) * 2; u = G_T + 10
            a.e(f'v_lshlrev_b32 v{u}, 16, v{x}')
            a.e(f'v_and_b32 v{u + 1}, s99, v{x}')
            a.e(f'v_lshlrev_b32 v{u + 2}, 16, v{x + 1}')
            a.e(f'v_and_b32 v{u + 3}, s99, v{x + 1}')
            for i in range(4): a.e(f'v_fma_f32 v{u + i}, v{u + i}, v{rs}, -v{m}')
            for i in range(4): a.e(f'v_add_f32 v{d + i}, v{d + i}, v{u + i}')
            for i in range(4):
                if b == 0 and i == 0:
                    a.e(f'v_mov_b32 v{SUM + 2 * nb}, v{d}')
                    a.e(f'v_mul_f32 v{SUM + 2 * nb + 1}, v{d}, v{d}')
                else:
                    a.e(f'v_add_f32 v{SUM + 2 * nb}, v{SUM + 2 * nb}, v{d + i}')
                    a.e(f'v_fmac_f32 v{SUM + 2 * nb + 1}, v{d + i}, v{d + i}')
    store_pieces(a, 2, g_acc, 64, WS_X1, 's94', f's{S_CT}', sc, 4)
    u = G_T + 10
    for swap in ('v_permlane16_swap_b32', 'v_permlane32_swap_b32'):
        for j in range(4): a.e(f'v_mov_b32 v{u + j}, v{SUM + j}')
        for j in range(4): a.e(f'{swap} v{u + j}, v{SUM + j}')
        for j in range(4): a.e(f'v_add_f32 v{SUM + j}, v{SUM + j}, v{u + j}')
    a.e(f'v_lshlrev_b32 v{u}, 5, v0')
    a.e(f's_lshl_b32 s96, s94, 5')
    a.e(f's_lshl_b32 s97, s{S_CT}, 3')
    a.e(f's_add_u32 s96, s96, s97')
    a.e(f's_add_u32 s96, s96, {WS_ST1}')
    a.e('s_mov_b64 exec, 0xffff')
    for nb in range(2):
        a.e(f'buffer_store_dwordx2 {v(SUM + 2 * nb, 2)}, v{u}, {srd("ws")}, s96 offen offset:{nb * 512} {sc}')
    a.e('s_mov_b64 exec, -1')
    stamp(a, 6)
    a.wait_all()
    stamp(a, 7)
    stamp_flush(a)
    a.raw(end + ':'); a.e('s_endpgm'); a.pad()
    return a


def store_pieces(a, NB, accf, fg, base, srow0, sct, sc, nS, skip_last_if=None, tmp=None, extra_soff=None):
    t = G_T + 14 if tmp is None else tmp
    a.e(f'v_lshlrev_b32 v{t}, 4, v0')
    a.e(f's_lshr_b32 s88, {srow0}, 4')
    a.e(f's_mul_i32 s88, s88, {fg * 256}')
    a.e(f's_lshl_b32 s89, {sct}, {10 + (nS.bit_length() - 1)}')
    a.e(f's_add_u32 s88, s88, s89')
    a.e(f's_add_u32 s88, s88, {base}')
    if extra_soff: a.e(f's_add_u32 s88, s88, {extra_soff}')
    for nb in range(NB):
        lab = None
        for Sp in range(nS):
            d0, d1 = accf(2 * Sp, nb), accf(2 * Sp + 1, nb)
            a.e(f'v_cvt_pk_bf16_f32 v{d0}, v{d0}, v{d0 + 1}')
            a.e(f'v_cvt_pk_bf16_f32 v{d0 + 1}, v{d0 + 2}, v{d0 + 3}')
            a.e(f'v_cvt_pk_bf16_f32 v{d0 + 2}, v{d1}, v{d1 + 1}')
            a.e(f'v_cvt_pk_bf16_f32 v{d0 + 3}, v{d1 + 2}, v{d1 + 3}')
            if skip_last_if is not None and Sp == nS - 1:
                lab = a.label('skip')
                a.e(f's_cmp_eq_u32 {sct}, {skip_last_if}')
                a.e(f's_cbranch_scc1 {lab}')
            a.e(f'buffer_store_dwordx4 {v(d0, 4)}, v{t}, {srd("ws")}, s88 offen offset:{Sp * 1024} {sc}', 'pst')
            if lab: a.raw(lab + ':')
        if nb + 1 < NB: a.e(f's_add_u32 s88, s88, {fg * 256}')


def m3a_kernel(name, sc=''):
    a = Asm(); end = name + '_end'
    prologue(a, ['w3', 'ws'], 176, end)
    tile_decode_128(a, 11)
    t0, t1 = G_T, G_T + 1
    a.e(f's_lshl_b32 s94, s{S_RT}, 2')
    a.e(f's_add_u32 s94, s94, s{S_W}')
    a.e(f's_lshl_b32 s94, s94, 5')
    a.e(f'v_lshlrev_b32 v{G_BA}, 4, v0')
    a.e(f's_lshl_b32 s95, s94, 10')
    a.e(f's_add_u32 s95, s95, {WS_X1}')
    for kappa in range(16):
        for nb in range(2):
            if (kappa & 3) == 0: a.e(f's_add_u32 s{96 + nb}, s95, {nb * 16384 + (kappa >> 2) * 4096}')
            a.e(f'buffer_load_dwordx4 {ar(GA_B + (kappa * 2 + nb) * 4, 4)}, v{G_BA}, {srd("ws")}, s{96 + nb} offen offset:{(kappa & 3) * 1024} {sc}')
        if kappa == 1: g128_common(a, 'w3', 'd16', 2752)
    a.e(f'v_and_b32 v{t0}, 15, v0')
    a.e(f'v_lshlrev_b32 v{G_T + 2}, 5, v{t0}')
    a.e(f'v_lshrrev_b32 v{t1}, 4, v0')
    a.e(f'v_lshlrev_b32 v{G_T + 3}, 4, v{t1}')
    a.e(f's_lshl_b32 s98, s94, 5')
    a.e(f's_add_u32 s98, s98, {WS_ST1}')
    a.e(f's_lshl_b32 s99, s{S_CT}, 9')
    a.e(f's_add_u32 s99, s99, {WS_CS3}')
    ex = []
    for nb in range(2):
        for hf in range(2):
            ex.append(f'buffer_load_dwordx4 {v(G_X + nb * 8 + hf * 4, 4)}, v{G_T + 2}, {srd("ws")}, s98 offen offset:{nb * 512 + hf * 16} {sc}')
    for b in range(8):
        ex.append(f'buffer_load_dwordx4 {v(G_CS + 4 * b, 4)}, v{G_T + 3}, {srd("ws")}, s99 offen offset:{b * 64} {sc}')
    gemm_main(a, 2, lambda b, nb: v(g_acc(b, nb), 4), lambda o, n: ar(GA_A + o, n),
              lambda k, nb: ar(GA_B + (k * 2 + nb) * 4, 4), g_vwr, G_SLOTS, 'w3', G_WD, 2752, 4,
              extra={8: ex})
    a.e(f's_mov_b32 s96, {fbits(1.0 / 512)}')
    a.e(f's_mov_b32 s{S_C2}, {fbits(GELU_C2)}')
    a.e(f'v_mov_b32 v{G_T + 15}, {fbits(GELU_C1)}')
    for nb in range(2):
        x = G_X + nb * 8; m = G_ST + 2 * nb
        a.e(f'v_pk_add_f32 {v(x, 2)}, {v(x, 2)}, {v(x + 2, 2)}')
        a.e(f'v_pk_add_f32 {v(x + 4, 2)}, {v(x + 4, 2)}, {v(x + 6, 2)}')
        a.e(f'v_pk_add_f32 {v(x, 2)}, {v(x, 2)}, {v(x + 4, 2)}')
        a.e(f'v_mul_f32 v{m}, s96, v{x}')
        a.e(f'v_mul_f32 v{m + 1}, s96, v{x + 1}')
        a.e(f'v_fma_f32 v{m + 1}, -v{m}, v{m}, v{m + 1}')
        a.e(f'v_max_f32 v{m + 1}, 0, v{m + 1}')
        a.e(f'v_add_f32 v{m + 1}, {fbits(EPS)}, v{m + 1}')
        a.e(f'v_rsq_f32 v{m + 1}, v{m + 1}')
    for nb in range(2):
        m = G_ST + 2 * nb
        for b in range(8):
            d = g_acc(b, nb)
            for p in (0, 2):
                a.e(f'v_pk_fma_f32 {v(d + p, 2)}, {v(m, 2)}, {v(G_CS + 4 * b + p, 2)}, {v(d + p, 2)} op_sel_hi:[0,1,1] neg_lo:[1,0,0] neg_hi:[1,0,0]')
            for p in (0, 2):
                a.e(f'v_pk_mul_f32 {v(d + p, 2)}, {v(d + p, 2)}, {v(m, 2)} op_sel:[0,1] op_sel_hi:[1,1]')
    for q in range(8):
        emit_staged(a, [gelu_ops(G_ACC + 8 * q + e, G_T + e, G_T + 15, S_C2) for e in range(8)])
    store_pieces(a, 2, g_acc, 172, WS_H3, 's94', f's{S_CT}', sc, 4, skip_last_if=10)
    stamp(a, 6)
    a.wait_all()
    stamp(a, 7)
    stamp_flush(a)
    a.raw(end + ':'); a.e('s_endpgm'); a.pad()
    return a


def op_acc(b, nb): return 16 + (b * 4 + nb) * 4


def op_kernel(name, sc=''):
    a = Asm(); end = name + '_end'
    prologue(a, ['wo', 'ws'], 256, end)
    decode_wg(a)
    T = 160
    a.e(f's_and_b32 s{S_CT}, s{S_H}, 3')
    a.e(f's_lshl_b32 s94, s{S_RB}, 2')
    a.e(f's_add_u32 s94, s94, s{S_W}')
    a.e(f's_lshl_b32 s95, s94, 19')
    a.e(f's_lshl_b32 s94, s94, 6')
    a.e(f's_lshl_b32 s96, s{S_X}, 14')
    a.e(f's_add_u32 s95, s95, s96')
    a.e(f's_add_u32 s95, s95, {WS_O}')
    a.e(f'v_lshlrev_b32 v{G_BA}, 4, v0')

    def bl(hh):
        it = []
        for nb in range(4):
            it.append(f's_add_u32 s96, s95, {nb * 131072 + hh * 4096}')
            for db in range(4):
                it.append(f'buffer_load_dwordx4 {ar(((hh % 3) * 16 + db * 4 + nb) * 4, 4)}, v{G_BA}, {srd("ws")}, s96 offen offset:{db * 1024} {sc}')
        return it
    for it in bl(0): a.e(it)
    gen_w_dma_addr(a, 'd32', 1024, G_WD, T, T + 1)
    a.e(f's_lshl_b32 s{S_SOW}, s{S_CT}, 8')
    a.e(f's_lshl_b32 s88, s{S_X}, 19')
    a.e(f's_add_u32 s{S_SOW}, s{S_SOW}, s88')
    a.e(f's_mul_i32 s{S_MW}, s{S_W}, 4224')
    for c in range(4):
        for it in w_dma_items('wo', c, G_SLOTS[c], G_WD, 1024, False): put(a, it)
        if c == 0:
            for it in bl(1): a.e(it)
    w_lane_read_addr(a, G_WR, T, T + 1)
    a.e(f'v_add_u32 v{G_WR + 1}, {2 * WCH}, v{G_WR}')
    gemm_main(a, 4, lambda b, nb: v(op_acc(b, nb), 4), lambda o, n: ar(192 + o, n),
              lambda k, nb: ar((((k >> 2) % 3) * 16 + (k & 3) * 4 + nb) * 4, 4), g_vwr, G_SLOTS, 'wo', G_WD, 1024, 4,
              extra={0: bl(2), 4: bl(3)})
    a.e(f's_lshl_b32 s97, s{S_X}, 21')
    store_pieces(a, 4, op_acc, 64, WS_PART, 's94', f's{S_CT}', sc, 4, tmp=T, extra_soff='s97')
    stamp(a, 6)
    a.wait_all()
    stamp(a, 7)
    stamp_flush(a)
    a.raw(end + ':'); a.e('s_endpgm'); a.pad()
    return a


F_KS = 4 * BLK
F_NS = 9


def fin_kernel(name, sc=''):
    a = Asm(); end = name + '_end'
    prologue(a, ['x', 'w4', 'ws', 'out'], 256, end)
    a.e(f's_and_b32 s{S_X}, s2, 7')
    a.e(f's_lshr_b32 s88, s2, 3')
    a.e(f's_and_b32 s{S_CT}, s88, 7')
    a.e(f's_lshr_b32 s88, s88, 3')
    a.e(f's_lshl_b32 s{S_RT}, s{S_X}, 2')
    a.e(f's_add_u32 s{S_RT}, s{S_RT}, s88')
    T = 80; WD = 4; WR = 1; BA = 8
    ACCF = lambda b, nb: 16 + (b * 4 + nb) * 4
    a.e(f's_mul_i32 s94, s{S_W}, 11')
    a.e(f's_min_u32 s94, s94, 32')
    a.e(f'v_lshlrev_b32 v{BA}, 4, v0')
    a.e(f'v_mov_b32 v{BA + 1}, 0x40000000')
    a.e(f's_cmp_eq_u32 s{S_W}, 3')
    a.e(f's_cselect_b64 vcc, -1, 0')
    a.e(f'v_cndmask_b32 v{BA + 1}, v{BA}, v{BA + 1}, vcc')
    a.e(f's_mul_i32 s95, s{S_RT}, {4 * 172 * 256}')
    a.e(f's_lshl_b32 s96, s94, 10')
    a.e(f's_add_u32 s95, s95, s96')
    a.e(f's_add_u32 s95, s95, {WS_H3}')
    a.e(f'v_bfe_u32 v{T}, v0, 3, 1')
    a.e(f'v_lshlrev_b32 v{T}, 2, v{T}')
    a.e(f'v_bfe_u32 v{T + 1}, v0, 4, 1')
    a.e(f'v_lshl_add_u32 v{T}, v{T + 1}, 4, v{T}')
    a.e(f'v_lshrrev_b32 v{T + 1}, 5, v0')
    a.e(f'v_lshl_add_u32 v{T}, v{T + 1}, 3, v{T}')
    a.e(f'v_lshlrev_b32 v{T}, 10, v{T}')
    a.e(f'v_and_b32 v{T + 1}, 7, v0')
    a.e(f'v_lshl_add_u32 v{T}, v{T + 1}, 4, v{T}')
    a.e(f'v_add_u32 v{WD}, {BIAS}, v{T}')
    for t in range(1, 4): a.e(f'v_subrev_u32 v{WD + t}, {t * 32}, v{WD}')
    a.e(f's_lshl_b32 s{S_SOW}, s94, 15')
    a.e(f's_lshl_b32 s96, s{S_CT}, 7')
    a.e(f's_add_u32 s{S_SOW}, s{S_SOW}, s96')
    a.e(f's_mul_i32 s{S_MW}, s{S_W}, {F_NS * F_KS}')

    def wd(k):
        it = [f's_add_u32 m0, s{S_MW}, {(k % F_NS) * F_KS}']
        for t in range(4):
            it.append((f'buffer_load_dwordx4 v{WD + t}, {srd("w4")}, s{S_SOW} offen offset:{t * BLK} lds', ('W', k)))
        it.append(f's_add_u32 s{S_SOW}, s{S_SOW}, 32768')
        return it

    def bl(k):
        it = []
        for nb in range(4):
            it.append(f's_add_u32 s96, s95, {nb * 172 * 256 + k * 1024}')
            it.append(f'buffer_load_dwordx4 {ar((k * 4 + nb) * 4, 4)}, v{BA + (1 if k == 0 else 0)}, {srd("ws")}, s96 offen {sc}')
        return it
    for k in range(7):
        for it in wd(k) + bl(k): put(a, it)
    a.e(f'v_bfe_u32 v{T}, v0, 2, 2')
    a.e(f'v_mul_u32_u24 v{T}, {BLK}, v{T}')
    a.e(f'v_bfe_u32 v{T + 1}, v0, 4, 1')
    a.e(f'v_lshl_add_u32 v{T}, v{T + 1}, 7, v{T}')
    a.e(f'v_lshrrev_b32 v{T + 1}, 5, v0')
    a.e(f'v_lshl_add_u32 v{T}, v{T + 1}, 9, v{T}')
    a.e(f'v_and_b32 v{T + 1}, 3, v0')
    a.e(f'v_lshl_add_u32 v{T}, v{T + 1}, 3, v{T}')
    a.e(f'v_add_u32 v{WR}, s{S_MW}, v{T}')
    AA = 192

    def a_reads(k, b):
        return [f'ds_read_b64_tr_b16 {ar(AA + (k & 1) * 16 + 4 * b + 2 * u, 2)}, v{WR} offset:{(k % F_NS) * F_KS + u * 256 + b * 32}' for u in (0, 1)]
    E = 96
    ex = [f's_lshl_b32 s97, s{S_RT}, 2', f's_add_u32 s97, s97, s{S_W}', f's_lshl_b32 s98, s97, 14',
          f's_lshl_b32 s99, s{S_CT}, 11', f's_add_u32 s98, s98, s99', f's_add_u32 s99, s98, {WS_X1}']
    for Sp in range(2):
        ex.append(f'buffer_load_dwordx4 {v(160 + 4 * Sp, 4)}, v{BA}, {srd("ws")}, s99 offen offset:{Sp * 1024} {sc}')
    ex.append(f's_add_u32 s99, s98, {WS_PART}')
    for j in range(8):
        for Sp in range(2):
            ex.append(f'buffer_load_dwordx4 {v(E + (j * 2 + Sp) * 4, 4)}, v{BA}, {srd("ws")}, s99 offen offset:{Sp * 1024} {sc}')
        if j < 7: ex.append(f's_add_u32 s99, s99, {2 << 20}')
    ex2 = [f'v_and_b32 v{T + 2}, 15, v0', f'v_lshrrev_b32 v{T + 3}, 4, v0', f'v_lshlrev_b32 v{T + 3}, 3, v{T + 3}',
           f'v_lshl_add_u32 v{BA + 2}, v{T + 2}, 10, v{T + 3}', f's_lshl_b32 s100, s97, 14', f's_lshl_b32 s99, s{S_CT}, 7',
           f's_add_u32 s100, s100, s99']
    for b in range(4):
        ex2.append(f'buffer_load_dwordx2 {v(168 + 2 * b, 2)}, v{BA + 2}, {srd("x")}, s100 offen offset:{b * 32}')
    stamp(a, 1)
    a.wait_tag(('W', 0))
    stamp(a, 2)
    for b in range(4):
        for r in a_reads(0, b): a.e(r)
    for k in range(11):
        mf = []
        for b in range(4):
            for nb in range(4):
                d = v(ACCF(b, nb), 4)
                mf.append(f'v_mfma_f32_16x16x32_bf16 {d}, {ar(AA + (k & 1) * 16 + 4 * b, 4)}, {ar((k * 4 + nb) * 4, 4)}, {d if k else 0}')
        fill = {}; pre = {0: [wait_lg(0)]}
        if k + 1 < 11:
            fill[0] = [(lambda kk: (lambda a_: a_.wait_tag(('W', kk))))(k + 1)]
            spread(fill, [r for b in range(4) for r in a_reads(k + 1, b)], 0, 8)
        if k + 7 < 11: spread(fill, wd(k + 7) + bl(k + 7), 4, 16)
        if k == 4: spread(fill, ex, 0, 16)
        if k == 5: spread(fill, ex2, 0, 16)
        interleave(a, mf, fill, pre)
    stamp(a, 3)
    a.e(f'v_lshlrev_b32 v{T}, 4, v0')
    a.e(f'v_add_u32 v{T + 1}, s{S_MW}, v{T}')
    for nb in range(4):
        for b in range(4):
            a.e(f'ds_write_b128 v{T + 1}, {v(ACCF(b, nb), 4)} offset:{nb * 4096 + b * 1024}')
    a.e(f's_lshl_b32 s96, s{S_W}, 12')
    a.e(f'v_add_u32 v{T}, s96, v{T}')
    a.e(f'v_add_u32 v{T + 1}, {2 * F_NS * F_KS}, v{T}')
    a.wait_lg0(); a.e('s_barrier')
    for w in range(4):
        for b in range(4):
            a.e(f'ds_read_b128 {v(ACCF(w, b), 4)}, v{T + (w >> 1)} offset:{(w & 1) * F_NS * F_KS + b * 1024}')
    SS = 176; U = T + 4
    a.e(f's_mov_b32 s99, 0xffff0000')
    for Sp in range(2):
        for r in range(4):
            o = SS + Sp * 8 + 2 * r
            for j in range(8):
                x = E + (j * 2 + Sp) * 4 + r
                if j == 0:
                    a.e(f'v_lshlrev_b32 v{o}, 16, v{x}')
                    a.e(f'v_and_b32 v{o + 1}, s99, v{x}')
                else:
                    a.e(f'v_lshlrev_b32 v{U}, 16, v{x}')
                    a.e(f'v_and_b32 v{U + 1}, s99, v{x}')
                    a.e(f'v_pk_add_f32 {v(o, 2)}, {v(o, 2)}, {v(U, 2)}')
    H = 16
    for p in range(0, 16, 2):
        a.e(f'v_pk_add_f32 {v(H + p, 2)}, {v(H + p, 2)}, {v(H + 16 + p, 2)}')
        a.e(f'v_pk_add_f32 {v(H + 32 + p, 2)}, {v(H + 32 + p, 2)}, {v(H + 48 + p, 2)}')
    for p in range(0, 16, 2):
        a.e(f'v_pk_add_f32 {v(H + p, 2)}, {v(H + p, 2)}, {v(H + 32 + p, 2)}')
    X1 = 32; XX = 48; TT = 64
    for r in range(8):
        a.e(f'v_lshlrev_b32 v{X1 + 2 * r}, 16, v{160 + r}')
        a.e(f'v_and_b32 v{X1 + 2 * r + 1}, s99, v{160 + r}')
        a.e(f'v_lshlrev_b32 v{XX + 2 * r}, 16, v{168 + r}')
        a.e(f'v_and_b32 v{XX + 2 * r + 1}, s99, v{168 + r}')
    a.e(f's_mov_b32 s98, {fbits(-1.4426950408889634)}')
    ch = []
    for e in range(16):
        y = H + e; t = TT + e
        ch.append([f'v_add_f32 v{y}, v{y}, v{X1 + e}', f'v_mul_f32 v{t}, s98, v{y}', f'v_exp_f32 v{t}, v{t}',
                   f'v_add_f32 v{t}, 1.0, v{t}', f'v_rcp_f32 v{t}, v{t}', f'v_mul_f32 v{y}, v{y}, v{SS + e}',
                   f'v_fma_f32 v{y}, v{y}, v{t}, v{XX + e}'])
    emit_staged(a, ch)
    for b in range(4):
        a.e(f'v_cvt_pk_bf16_f32 v{X1 + 2 * b}, v{H + 4 * b}, v{H + 4 * b + 1}')
        a.e(f'v_cvt_pk_bf16_f32 v{X1 + 2 * b + 1}, v{H + 4 * b + 2}, v{H + 4 * b + 3}')
    for b in range(4):
        a.e(f'buffer_store_dwordx2 {v(X1 + 2 * b, 2)}, v{BA + 2}, {srd("out")}, s100 offen offset:{b * 32}')
    stamp(a, 6)
    a.wait_all()
    stamp(a, 7)
    stamp_flush(a)
    a.raw(end + ':'); a.e('s_endpgm'); a.pad()
    return a


def row_stats(a, srow0, T, sc=''):
    a.e(f'v_lshlrev_b32 v{T}, 5, v0')
    a.e(f's_lshl_b32 s88, {srow0}, 10')
    a.e(f'buffer_load_dwordx4 {v(T + 4, 4)}, v{T}, {srd("x")}, s88 offen')
    a.e(f'buffer_load_dwordx4 {v(T + 8, 4)}, v{T}, {srd("x")}, s88 offen offset:16')
    a.e(f's_mov_b32 s89, 0xffff0000')
    X = T + 12
    for r in range(8):
        a.e(f'v_lshlrev_b32 v{X + 2 * r}, 16, v{T + 4 + r}')
        a.e(f'v_and_b32 v{X + 2 * r + 1}, s89, v{T + 4 + r}')

    def red(s):
        for sh in (8, 4, 2, 1):
            a.e(f'v_add_f32_dpp v{s}, v{s}, v{s} row_ror:{sh} row_mask:0xf bank_mask:0xf')
        a.e(f'v_mov_b32 v{T + 1}, v{s}')
        a.e(f'v_permlane16_swap_b32 v{T + 1}, v{s}')
        a.e(f'v_add_f32 v{s}, v{s}, v{T + 1}')
    a.e(f'v_add_f32 v{T + 2}, v{X}, v{X + 1}')
    for e in range(2, 16): a.e(f'v_add_f32 v{T + 2}, v{T + 2}, v{X + e}')
    red(T + 2)
    a.e(f'v_mul_f32 v{T + 2}, {fbits(1.0 / 512)}, v{T + 2}')
    for e in range(16): a.e(f'v_sub_f32 v{X + e}, v{X + e}, v{T + 2}')
    a.e(f'v_mul_f32 v{T + 3}, v{X}, v{X}')
    for e in range(1, 16): a.e(f'v_fmac_f32 v{T + 3}, v{X + e}, v{X + e}')
    red(T + 3)
    a.e(f'v_mov_b32 v{T + 1}, {fbits(EPS)}')
    a.e(f'v_fmac_f32 v{T + 1}, {fbits(1.0 / 512)}, v{T + 3}')
    a.e(f'v_rsq_f32 v{T + 3}, v{T + 1}')
    a.e(f'v_lshrrev_b32 v{T}, 5, v0')
    a.e(f'v_lshlrev_b32 v{T}, 3, v{T}')
    a.e(f's_lshl_b32 s88, {srow0}, 3')
    a.e('s_mov_b32 exec_lo, 1')
    a.e('s_mov_b32 exec_hi, 1')
    a.e(f'buffer_store_dwordx2 {v(T + 2, 2)}, v{T}, {srd("ws")}, s88 offen {sc}', 'stst')
    a.e('s_mov_b64 exec, -1')


def k0_kernel(name):
    a = Asm(); end = name + '_end'
    prologue(a, ['x', 'wq', 'w1', 'w3', 'ws'], 256, end)
    a.e('s_lshl_b32 s94, s2, 2')
    a.e(f's_add_u32 s94, s94, s{S_W}')
    a.e('s_lshl_b32 s94, s94, 1')
    row_stats(a, 's94', 4)
    a.wait_all()
    a.e('s_cmp_ge_u32 s2, 94')
    a.e(f's_cbranch_scc1 {end}x')
    lab_sum = a.label('k0sum')
    T = 4
    a.e(f'v_lshrrev_b32 v{T}, 5, v0')
    a.e(f's_lshl_b32 s88, s{S_W}, 1')
    a.e(f'v_add_u32 v{T}, s88, v{T}')
    a.e(f'v_and_b32 v{T + 1}, 31, v0')
    for wn, lo, hi, stride, dst in (('wq', 0, 64, 8192, WS_CSQ), ('w1', 64, 72, 1024, WS_CS1), ('w3', 72, 94, 2752, WS_CS3)):
        nx = a.label('k0n')
        if hi < 94:
            a.e(f's_cmp_ge_u32 s2, {hi}')
            a.e(f's_cbranch_scc1 {nx}')
        a.e(f's_sub_u32 s90, s2, {lo}')
        a.e(f's_lshl_b32 s91, s90, 8')
        a.e(f's_add_u32 s91, s91, {dst}')
        a.e(f's_lshl_b32 s90, s90, 7')
        a.e(f's_mov_b32 s92, {64 * stride}')
        a.e(f'v_mul_lo_u32 v{T + 2}, v{T}, s92')
        a.e(f'v_lshl_add_u32 v{T + 2}, v{T + 1}, 2, v{T + 2}')
        for r in range(64):
            a.e(f'buffer_load_dword v{16 + r}, v{T + 2}, {srd(wn)}, s90 offen')
            a.e(f's_add_u32 s90, s90, {stride}')
        a.wait_all()
        if hi < 94: a.e(f's_branch {lab_sum}')
        a.raw(nx + ':')
    a.raw(lab_sum + ':')
    a.e('s_mov_b32 s89, 0xffff0000')
    a.e(f'v_mov_b32 v8, 0'); a.e('v_mov_b32 v9, 0')
    for r in range(64):
        a.e(f'v_lshlrev_b32 v10, 16, v{16 + r}')
        a.e(f'v_and_b32 v11, s89, v{16 + r}')
        a.e('v_pk_add_f32 v[8:9], v[8:9], v[10:11]')
    a.e(f'v_lshlrev_b32 v12, 8, v{T}')
    a.e(f'v_lshl_add_u32 v12, v{T + 1}, 3, v12')
    a.e('ds_write_b64 v12, v[8:9]')
    a.wait_lg0(); a.e('s_barrier')
    a.e(f'v_lshlrev_b32 v12, 3, v{T + 1}')
    for r in range(8): a.e(f'ds_read_b64 {v(16 + 2 * r, 2)}, v12 offset:{r * 256}')
    for r in range(1, 8): a.e(f'v_pk_add_f32 v[16:17], v[16:17], {v(16 + 2 * r, 2)}')
    a.e(f'buffer_store_dwordx2 v[16:17], v12, {srd("ws")}, s91 offen')
    a.raw(end + 'x:')
    stamp(a, 6)
    a.wait_all()
    stamp(a, 7)
    stamp_flush(a)
    a.raw(end + ':'); a.e('s_endpgm'); a.pad()
    return a
```

```python
import sys
from common import *
import attn, gemms
HDR = open('recurrent_scan__sliding_block_cached__mixer_s_mlp__prompt.s.ref').read().split('; Override launch')[0]
def build(kernels, path):
    s = HDR
    for name, a, grid, lds in kernels:
        s += f'; @launch kernel={name} grid=({grid},1,1) block=(256,1,1) lds={lds}\n'
    s += '.amdgcn_target "amdgcn-amd-amdhsa--gfx950"\n.text\n'
    seen = set()
    for name, a, grid, lds in kernels:
        if name in seen: continue
        seen.add(name)
        s += kernel_text(name, a.text())
        print(name, 'instr', len(a.ins), 'waits', a.nwait, 'pads', a.npad, file=sys.stderr)
    s += '.section .rodata,"a"\n'
    for name in dict.fromkeys(k[0] for k in kernels): s += kd_text(name)
    open(path, 'w').write(s)
if __name__ == '__main__':
    if 'ts' in sys.argv[2:]: STAMPS['on'] = True
    sc = 'sc1' if 'sc1' in sys.argv[2:] else ''
    ks = [('k0_kernel', gemms.k0_kernel('k0_kernel'), 256, 4096),
          ('attn_kernel', attn.attn_kernel('attn_kernel', sc), 256, attn.LDS_ATT),
          ('m2_kernel', gemms.m2_kernel('m2_kernel', sc), 64, 4 * WCH),
          ('m3a_kernel', gemms.m3a_kernel('m3a_kernel', sc), 176, 4 * WCH),
          ('op_kernel', gemms.op_kernel('op_kernel', sc), 256, 4 * WCH),
          ('fin_kernel', gemms.fin_kernel('fin_kernel', sc), 256, 4 * gemms.F_NS * gemms.F_KS)]
    build(ks, sys.argv[1] if len(sys.argv) > 1 else 'v1.s')
```

```python
from common import *

QSLOT = WCH + 2048 + 32768
QS = [0, QSLOT, 2 * QSLOT]
KV_T = 16 * 1088
K_BASE = 2 * QSLOT
K_SLOT = [0, 2 * KV_T]
V_BASE = K_BASE - KV_T
V_SLOT = [2 * KV_T, 0]
LDS_ATT = K_BASE + 3 * KV_T

V_KR, V_VR, V_KD, V_VD, V_L, V_T = 1, 3, 4, 8, 12, 14
ACC = 16
V_WR, V_W1R, V_XR, V_WD, V_XD, V_W1D = 160, 163, 166, 172, 176, 180
V_ST, V_CS, V_TMP = 182, 192, 228
A_A, A_B = 0, 40
A_Q, A_K, A_V = 128, 192, 224
V_O, V_S, V_P = 16, 144, 208
S_SOQ, S_SO1, S_SOX, S_SOX2, S_SOK, S_M = 90, 91, 92, 93, 94, 95
S_MW, S_MW1, S_MX, S_MK = 96, 97, 98, 99
S_C1, S_C2 = 100, 101


def acc(b, nb):
    return ACC + (b * 4 + nb) * 4


def decode_wg(a):
    a.e(f's_and_b32 s{S_X}, s2, 7')
    a.e(f's_lshr_b32 s88, s2, 3')
    a.e(f's_and_b32 s{S_H}, s88, 3')
    a.e(f's_lshl_b32 s89, s{S_X}, 2')
    a.e(f's_add_u32 s{S_H}, s{S_H}, s89')
    a.e(f's_lshr_b32 s{S_RB}, s88, 2')


def qp_setup(a):
    t0, t1 = V_TMP, V_TMP + 1
    gen_w_dma_addr(a, 'nat', 8192, V_WD, t0, t1)
    a.e(f'v_lshrrev_b32 v{t0}, 3, v0')
    a.e(f'v_lshrrev_b32 v{t1}, 4, v0')
    a.e(f'v_xor_b32 v{t1}, v{t1}, v0')
    a.e(f'v_and_b32 v{t1}, 7, v{t1}')
    a.e(f'v_lshlrev_b32 v{t1}, 4, v{t1}')
    a.e(f'v_lshl_add_u32 v{V_XD}, v{t0}, 10, v{t1}')
    a.e(f'v_xor_b32 v{V_XD + 1}, 64, v{V_XD}')
    a.e(f'v_add_u32 v{V_XD + 1}, {8192 - 1024}, v{V_XD + 1}')
    a.e(f'v_add_u32 v{V_XD + 2}, {2 * (8192 - 1024)}, v{V_XD}')
    a.e(f'v_add_u32 v{V_XD + 3}, {2 * (8192 - 1024)}, v{V_XD + 1}')
    a.e(f'v_bfe_u32 v{t0}, v0, 1, 2')
    a.e(f'v_bfe_u32 v{t1}, v0, 4, 1')
    a.e(f'v_lshl_add_u32 v{t0}, v{t1}, 2, v{t0}')
    a.e(f'v_bfe_u32 v{t1}, v0, 3, 1')
    a.e(f'v_lshl_add_u32 v{t0}, v{t1}, 3, v{t0}')
    a.e(f'v_lshrrev_b32 v{t1}, 5, v0')
    a.e(f'v_lshl_add_u32 v{t0}, v{t1}, 4, v{t0}')
    a.e(f's_and_b32 s88, s{S_W}, 1')
    a.e(f's_lshl_b32 s89, s88, 5')
    a.e(f'v_add_u32 v{t0}, s89, v{t0}')
    a.e(f'v_and_b32 v{t1}, 1, v0')
    a.e(f'v_lshlrev_b32 v{t1}, 4, v{t1}')
    a.e(f'v_lshl_add_u32 v{V_W1D}, v{t0}, 10, v{t1}')
    a.e(f's_lshl_b32 s{S_SOQ}, s{S_H}, 8')
    a.e(f's_lshl_b32 s{S_SO1}, s{S_H}, 5')
    a.e(f's_lshl_b32 s{S_SOX}, s{S_RB}, 2')
    a.e(f's_add_u32 s{S_SOX}, s{S_SOX}, s{S_W}')
    a.e(f's_lshl_b32 s{S_SOX}, s{S_SOX}, 16')
    a.e(f's_add_u32 s{S_SOX2}, s{S_SOX}, 32768')
    a.e(f's_mul_i32 s{S_MW}, s{S_W}, 4224')
    a.e(f's_lshl_b32 s{S_MW1}, s88, 10')
    a.e(f's_add_u32 s{S_MW1}, s{S_MW1}, {WCH}')
    a.e(f's_lshl_b32 s{S_MX}, s{S_W}, 13')
    a.e(f's_add_u32 s{S_MX}, s{S_MX}, {WCH + 2048}')


def qp_dma_items(c):
    sl = QS[c % 3]; tag = ('Q', c); it = []
    it.append(f's_add_u32 m0, s{S_MX}, {sl}')
    for t in range(4):
        it.append((f'buffer_load_dwordx4 v{V_XD + t}, {srd("x")}, s{S_SOX} offen offset:{t * 1024} lds', tag))
    it.append(f's_add_u32 m0, s{S_MW}, {sl}')
    for t in range(4):
        it.append((f'buffer_load_dwordx4 v{V_WD + t}, {srd("wq")}, s{S_SOQ} offen offset:{t * BLK} lds', tag))
    it.append(f's_add_u32 m0, s{S_MX}, {sl + 4096}')
    for t in range(4):
        it.append((f'buffer_load_dwordx4 v{V_XD + t}, {srd("x")}, s{S_SOX2} offen offset:{t * 1024} lds', tag))
    it.append(f's_add_u32 m0, s{S_MW1}, {sl}')
    it.append((f'buffer_load_dwordx4 v{V_W1D}, {srd("w1")}, s{S_SO1} offen lds', tag))
    if c < 7:
        it.append(f's_add_u32 s{S_SOQ}, s{S_SOQ}, {64 * 8192}')
        it.append(f's_add_u32 s{S_SO1}, s{S_SO1}, {64 * 1024}')
        it.append(f's_add_u32 s{S_SOX}, s{S_SOX}, 128')
        it.append(f's_add_u32 s{S_SOX2}, s{S_SOX2}, 128')
    return it


def qp_setup_reads(a):
    t0, t1 = V_TMP, V_TMP + 1
    w_lane_read_addr(a, V_WR, t0, t1)
    a.e(f'v_add_u32 v{V_WR + 1}, {QS[1]}, v{V_WR}')
    a.e(f'v_add_u32 v{V_WR + 2}, {QS[2]}, v{V_WR}')
    a.e(f'v_bfe_u32 v{t0}, v0, 2, 3')
    a.e(f'v_lshlrev_b32 v{t0}, 5, v{t0}')
    a.e(f'v_lshrrev_b32 v{t1}, 5, v0')
    a.e(f'v_lshl_add_u32 v{t0}, v{t1}, 9, v{t0}')
    a.e(f'v_and_b32 v{t1}, 3, v0')
    a.e(f'v_lshl_add_u32 v{t0}, v{t1}, 3, v{t0}')
    for s in range(3):
        a.e(f'v_add_u32 v{V_W1R + s}, {QS[s] + WCH}, v{t0}')
    a.e(f'v_and_b32 v{t0}, 15, v0')
    a.e(f'v_lshrrev_b32 v{t1}, 1, v{t0}')
    a.e(f'v_lshlrev_b32 v{t0}, 7, v{t0}')
    a.e(f'v_lshrrev_b32 v{V_XR}, 4, v0')
    a.e(f'v_xor_b32 v{t1}, v{t1}, v{V_XR}')
    a.e(f'v_lshl_add_u32 v{t0}, v{t1}, 4, v{t0}')
    a.e(f'v_add_u32 v{V_XR}, s{S_MX}, v{t0}')
    a.e(f'v_xor_b32 v{V_XR + 1}, 64, v{V_XR}')
    for s in (1, 2):
        a.e(f'v_add_u32 v{V_XR + 2 * s}, {QS[s]}, v{V_XR}')
        a.e(f'v_add_u32 v{V_XR + 2 * s + 1}, {QS[s]}, v{V_XR + 1}')


def core_setup(a):
    t0, t1 = V_TMP, V_TMP + 1
    a.e(f'v_lshrrev_b32 v{t0}, 4, v0')
    a.e(f'v_and_b32 v{t1}, 15, v0')
    a.e(f's_lshl_b32 s88, s{S_W}, 12')
    a.e(f's_add_u32 s88, s88, {1536 * 256}')
    a.e(f'v_lshlrev_b32 v{V_VD}, 10, v{t0}')
    a.e(f'v_lshl_add_u32 v{V_VD}, v{t1}, 4, v{V_VD}')
    a.e(f'v_add_u32 v{V_VD}, s88, v{V_VD}')
    a.e(f'v_xor_b32 v{t1}, v{t1}, v{t0}')
    a.e(f'v_lshlrev_b32 v{t0}, 8, v{t0}')
    a.e(f'v_lshl_add_u32 v{t0}, v{t1}, 4, v{t0}')
    a.e(f'v_add_u32 v{V_KD}, s88, v{t0}')
    for t in range(1, 4):
        a.e(f'v_subrev_u32 v{V_KD + t}, {t * 64}, v{V_KD}')
        a.e(f'v_subrev_u32 v{V_VD + t}, {t * 832}, v{V_VD}')
    a.e(f's_lshl_b32 s{S_SOK}, s{S_H}, 19')
    a.e(f's_mul_i32 s{S_MK}, s{S_W}, 4352')
    a.e(f'v_bfe_u32 v{t0}, v0, 2, 3')
    a.e(f'v_mul_u32_u24 v{t0}, 1088, v{t0}')
    a.e(f'v_and_b32 v{t1}, 3, v0')
    a.e(f'v_lshl_add_u32 v{t0}, v{t1}, 8, v{t0}')
    a.e(f'v_lshrrev_b32 v{V_KR}, 5, v0')
    a.e(f'v_xor_b32 v{t1}, v{t1}, v{V_KR}')
    a.e(f'v_lshlrev_b32 v{t1}, 4, v{t1}')
    a.e(f'v_xor_b32 v{V_KR + 1}, 32, v{t1}')
    a.e(f'v_add3_u32 v{V_KR}, v{t0}, v{t1}, s89') if False else None
    a.e(f's_mov_b32 s89, {K_BASE}')
    a.e(f'v_add3_u32 v{V_KR}, v{t0}, v{t1}, s89')
    a.e(f'v_add3_u32 v{V_KR + 1}, v{t0}, v{V_KR + 1}, s89')
    a.e(f'v_bfe_u32 v{t0}, v0, 2, 2')
    a.e(f'v_mul_u32_u24 v{t0}, 1088, v{t0}')
    a.e(f'v_lshrrev_b32 v{t1}, 5, v0')
    a.e(f'v_lshl_add_u32 v{t0}, v{t1}, 8, v{t0}')
    a.e(f'v_bfe_u32 v{t1}, v0, 4, 1')
    a.e(f'v_lshl_add_u32 v{t0}, v{t1}, 5, v{t0}')
    a.e(f'v_and_b32 v{t1}, 3, v0')
    a.e(f'v_lshl_add_u32 v{t0}, v{t1}, 3, v{t0}')
    a.e(f'v_add_u32 v{V_VR}, {V_BASE}, v{t0}')


def k_dma_items(T):
    it = [f's_add_u32 m0, s{S_MK}, {K_BASE + K_SLOT[T & 1]}', f's_add_u32 s{S_M}, s{S_SOK}, {T * 16384}']
    for t in range(4):
        it.append((f'buffer_load_dwordx4 v{V_KD + t}, {srd("k")}, s{S_M} offen offset:{t * 1088} lds', ('K', T)))
    return it


def v_dma_items(T):
    it = [f's_add_u32 m0, s{S_MK}, {V_BASE + V_SLOT[T & 1]}', f's_add_u32 s{S_M}, s{S_SOK}, {T * 16384}']
    for t in range(4):
        it.append((f'buffer_load_dwordx4 v{V_VD + t}, {srd("v")}, s{S_M} offen offset:{t * 1088} lds', ('V', T)))
    return it


def qp_a_reads(kappa, b):
    c, ks = kappa >> 1, kappa & 1; sl = c % 3
    if b < 8:
        return [f'ds_read_b64_tr_b16 {ar(A_A + 4 * b + 2 * u, 2)}, v{V_WR + sl} offset:{ks * KS_BYTES + u * 256 + b * 32}' for u in (0, 1)]
    return [f'ds_read_b64_tr_b16 {ar(A_A + 32 + 2 * u, 2)}, v{V_W1R + sl} offset:{ks * 1024 + u * 256}' for u in (0, 1)]


def qp_b_read(kappa, nb):
    c, ks = kappa >> 1, kappa & 1; sl = c % 3
    return f'ds_read_b128 {ar(A_B + 16 * ks + 4 * nb, 4)}, v{V_XR + 2 * sl + ks} offset:{nb * 2048}'


def k_read(it, s):
    T, kh = it >> 1, it & 1
    return f'ds_read_b128 {ar(A_K + 4 * s, 4)}, v{V_KR + (s & 1)} offset:{K_SLOT[T & 1] + kh * 8704 + (s >> 1) * 64}'


def v_reads(it, sp, db):
    T, kh = it >> 1, it & 1
    return [f'ds_read_b64_tr_b16 {ar(A_V + 16 * sp + 4 * db + 2 * u, 2)}, v{V_VR} offset:{V_SLOT[T & 1] + (2 * kh + sp) * 4352 + u * 512 + db * 64}' for u in (0, 1)]


def barrier(*tags):
    def f(a):
        a.wait_tag(*tags, lg0=True)
        a.e('s_barrier')
    return f


def wait_lg(n):
    def f(a):
        if len(a.lg) > n: a._wait(None, n)
    return f


OPT = dict(qp_dma='spread', core_order='mv', nodma=False)


def qp_main(a, extra_fill=None):
    a.wait_tag(('Q', 0)); a.e('s_barrier')
    stamp(a, 2)
    for nb in range(4): a.e(qp_b_read(0, nb))
    for b in range(9):
        for r in qp_a_reads(0, b): a.e(r)
    mf = []; fill = {}; pre = {}; late = {}
    N = 36
    for kappa in range(16):
        c, ks = kappa >> 1, kappa & 1
        g0 = kappa * N
        for b in range(9):
            for nb in range(4):
                d = v(acc(b, nb), 4)
                mf.append(f'v_mfma_f32_16x16x32_bf16 {d}, {ar(A_A + 4 * b, 4)}, {ar(A_B + 16 * ks + 4 * nb, 4)}, {d if kappa else 0}')
        pre[g0] = [wait_lg(2)]
        nxt = kappa + 1
        first = 3
        if ks == 1:
            first = 7
            fill.setdefault(g0 + 7, []).append(barrier(('Q', c + 1)) if c < 7 else barrier(('K', 0)))
        if nxt < 16:
            for b in range(9):
                pos = max(4 * b + 3, first + (b if 4 * b + 3 <= first else 0))
                rr = qp_a_reads(nxt, b)
                fill.setdefault(g0 + pos, []).append(rr[0])
                fill.setdefault(g0 + min(pos + 1, 35), []).append(rr[1])
            for nb in range(4):
                fill.setdefault(g0 + first + 2 + 4 * nb + (0 if first == 3 else 1), []).append(qp_b_read(nxt, nb))
        else:
            for s in range(8): fill.setdefault(g0 + 8 + 2 * s, []).append(k_read(0, s))
        items = []
        if ks == 1 and c + 3 <= 7: items = qp_dma_items(c + 3)
        if ks == 1 and c == 5: items = k_dma_items(0) + v_dma_items(0) + k_dma_items(1)
        if kappa == 0 and OPT['qp_dma'] == 'spread':
            spread(late, qp_dma_items(2), 0, N + 7)
        if items and not (OPT['nodma'] and c < 5):
            if OPT['qp_dma'] == 'spread': spread(late, items, g0 + 8, g0 + 2 * N + 6)
            else: spread(late, items, g0 + 9, g0 + N)
        if extra_fill and kappa in extra_fill: spread(late, extra_fill[kappa], g0 + 9, g0 + N)
    for k, l in late.items(): fill.setdefault(k, []).extend(l)
    interleave(a, mf, fill, pre)


def stats_loads(tag='st'):
    t0, t1 = V_TMP + 2, V_TMP + 3
    it = [f'v_and_b32 v{t0}, 15, v0', f'v_lshlrev_b32 v{t0}, 3, v{t0}',
          f's_lshl_b32 s88, s{S_RB}, 2', f's_add_u32 s88, s88, s{S_W}', f's_lshl_b32 s88, s88, 9']
    for nb in range(4):
        it.append((f'buffer_load_dwordx2 {v(V_ST + 2 * nb, 2)}, v{t0}, {srd("ws")}, s88 offen offset:{nb * 128}', tag))
    it += [f'v_lshrrev_b32 v{t1}, 4, v0', f'v_lshlrev_b32 v{t1}, 4, v{t1}',
           f's_lshl_b32 s89, s{S_H}, 9', f's_add_u32 s89, s89, {WS_CSQ}']
    for b in range(8):
        it.append((f'buffer_load_dwordx4 {v(V_CS + 4 * b, 4)}, v{t1}, {srd("ws")}, s89 offen offset:{b * 64}', tag))
    it += [f's_lshl_b32 s88, s{S_H}, 6', f's_add_u32 s88, s88, {WS_CS1}']
    it.append((f'buffer_load_dwordx4 {v(V_CS + 32, 4)}, v{t1}, {srd("ws")}, s88 offen', tag))
    return it


QSCALE = 1.4426950408889634 * 128 ** -0.5
EPS = 1e-5


def qp_epilogue(a, sc=''):
    T = V_TMP
    a.e(f's_mov_b32 s88, {fbits(QSCALE)}')
    a.e(f's_mov_b32 s89, {fbits(-EPS)}')
    a.e(f'v_mov_b32 v{T}, {fbits(1.0 + EPS)}')
    for nb in range(4):
        r = V_ST + 2 * nb + 1
        a.e(f'v_mul_f32 v{T + 12 + nb}, v{r}, v{r}')
        a.e(f'v_fma_f32 v{T + 12 + nb}, v{T + 12 + nb}, s89, v{T}')
        a.e(f'v_rsq_f32 v{T + 12 + nb}, v{T + 12 + nb}')
        a.e(f'v_mul_f32 v{T + 8 + nb}, s88, v{r}')
    for nb in range(4):
        a.e(f'v_mul_f32 v{T + 12 + nb}, v{T + 12 + nb}, v{V_ST + 2 * nb + 1}')

    def corr(b, nb, scale):
        d = acc(b, nb); m = V_ST + 2 * nb
        sp = scale & ~1; osel = scale & 1
        o = []
        for p in (0, 2):
            o.append(f'v_pk_fma_f32 {v(d + p, 2)}, {v(m, 2)}, {v(V_CS + 4 * b + p, 2)}, {v(d + p, 2)} op_sel_hi:[0,1,1] neg_lo:[1,0,0] neg_hi:[1,0,0]')
        for p in (0, 2):
            o.append(f'v_pk_mul_f32 {v(d + p, 2)}, {v(d + p, 2)}, {v(sp, 2)} op_sel:[0,{osel}] op_sel_hi:[1,{osel}]')
        return o
    a.e(f's_mov_b32 s{S_C2}, {fbits(GELU_C2)}')
    a.e(f'v_mov_b32 v{T + 16}, {fbits(GELU_C1)}')
    emit_staged(a, [corr(8, nb, T + 12 + nb) for nb in range(4)])
    for half in range(2):
        emit_staged(a, [gelu_ops(acc(8, 0) + 8 * half + e, T + e, T + 16, S_C2) for e in range(8)])
    H = T
    for nb in range(4):
        d = acc(8, nb)
        a.e(f'v_cvt_pk_bf16_f32 v{H + 2 * nb}, v{d}, v{d + 1}')
        a.e(f'v_cvt_pk_bf16_f32 v{H + 2 * nb + 1}, v{d + 2}, v{d + 3}')
    t0, t1 = T + 17, T + 18
    a.e(f'v_bfe_u32 v{t0}, v0, 4, 1')
    a.e(f'v_lshlrev_b32 v{t0}, 14, v{t0}')
    a.e(f'v_lshrrev_b32 v{t1}, 5, v0')
    a.e(f'v_lshl_add_u32 v{t0}, v{t1}, 8, v{t0}')
    a.e(f'v_and_b32 v{t1}, 15, v0')
    a.e(f'v_lshl_add_u32 v{t0}, v{t1}, 4, v{t0}')
    a.e(f's_lshl_b32 s88, s{S_RB}, 2')
    a.e(f's_add_u32 s88, s88, s{S_W}')
    a.e(f's_lshl_b32 s88, s88, 16')
    a.e(f's_lshl_b32 s89, s{S_H}, 9')
    a.e(f's_add_u32 s88, s88, s89')
    a.e(f's_add_u32 s89, s88, 32768')
    for j in range(2):
        for r in range(2):
            a.e(f'v_permlane16_swap_b32 v{H + 4 * j + r}, v{H + 4 * j + 2 + r}')
    for j in range(2):
        a.e(f'buffer_store_dwordx4 {v(H + 4 * j, 4)}, v{t0}, {srd("h")}, s{88 + j} offen {sc}', 'hst')
    for Qb in range(2):
        for b0 in range(0, 8, 2):
            emit_staged(a, [corr(b, 2 * Qb + q, T + 8 + 2 * Qb + q) for b in (b0, b0 + 1) for q in (0, 1)])
            for b in (b0, b0 + 1):
                for q in (0, 1):
                    d = acc(b, 2 * Qb + q); R = acc(b, 2 * Qb)
                    if q == 0:
                        a.e(f'v_cvt_pk_bf16_f32 v{R}, v{d}, v{d + 1}')
                        a.e(f'v_cvt_pk_bf16_f32 v{R + 1}, v{d + 2}, v{d + 3}')
                    else:
                        a.e(f'v_cvt_pk_bf16_f32 v{R + 2}, v{d}, v{d + 1}')
                        a.e(f'v_cvt_pk_bf16_f32 v{R + 3}, v{d + 2}, v{d + 3}')
            for b in (b0, b0 + 1):
                R = acc(b, 2 * Qb)
                for r in range(2): a.e(f'v_permlane16_swap_b32 v{R + r}, v{R + 2 + r}')
            for b in (b0, b0 + 1):
                R = acc(b, 2 * Qb)
                for r in range(4): a.e(f'v_accvgpr_write_b32 a{A_Q + (Qb * 8 + b) * 4 + r}, v{R + r}')


def S(p, Qb): return V_S + 32 * p + 16 * Qb
def P(p, Qb): return V_P + 16 * p + 8 * Qb
def O(db, Qb): return V_O + (db * 2 + Qb) * 16


def softmax_items(i):
    p = i & 1; out = []
    for e in range(32):
        Qb, r = e >> 4, e & 15
        x = S(p, Qb) + r
        ex = f'v_exp_f32 v{x}, v{x}'
        ad = f'v_add_f32 v{V_L + Qb}, v{V_L + Qb}, v{x}' if (i or r) else f'v_mov_b32 v{V_L + Qb}, v{x}'
        cv = f'v_cvt_pk_bf16_f32 v{P(p, Qb) + (r >> 1)}, v{x - 1}, v{x}' if r & 1 else None
        out.append((ex, ad, cv))
    seq = []
    for e in range(33):
        g = []
        if e < 32: g.append(out[e][0])
        if e >= 1:
            g.append(out[e - 1][1])
            if out[e - 1][2]: g.append(out[e - 1][2])
        seq.append(g)
    return seq


def core(a, tail_items=None):
    def qk(i):
        p = i & 1; l = []
        for s in range(8):
            for Qb in range(2):
                d = v(S(p, Qb), 16)
                l.append(f'v_mfma_f32_32x32x16_bf16 {d}, {ar(A_K + 4 * s, 4)}, {ar(A_Q + (Qb * 8 + s) * 4, 4)}, {d if s else 0}')
        return l

    def pv(i):
        p = i & 1; l = []
        for sp in range(2):
            for db in range(4):
                for Qb in range(2):
                    d = v(O(db, Qb), 16)
                    l.append(f'v_mfma_f32_32x32x16_bf16 {d}, {ar(A_V + 16 * sp + 4 * db, 4)}, {v(P(p, Qb) + 4 * sp, 4)}, {d if (i or sp) else 0}')
        return l

    for i in range(-1, 17):
        mf = []; mem = {}; val = {}; pre = {}
        hasqk = i + 1 <= 15; haspv = i - 1 >= 0
        if hasqk: mf += qk(i + 1)
        npv0 = len(mf)
        if haspv: mf += pv(i - 1)
        n = len(mf)
        dma = []
        if i >= 0 and i % 2 == 0 and i <= 14:
            j = i // 2
            tags = [('V', j)] + ([('K', j + 1)] if j + 1 <= 7 else [])
            bpos = 15 if i > 0 else 1
            mem.setdefault(bpos, []).append(barrier(*tags))
            if j + 2 <= 7: dma += k_dma_items(j + 2)
            if j + 1 <= 7: dma += v_dma_items(j + 1)
        if i + 2 <= 15:
            if haspv:
                for s in range(8): mem.setdefault(npv0 + s, []).append(k_read(i + 2, s))
            else:
                for s in range(8): mem.setdefault(2 * s + 1, []).append(k_read(i + 2, s))
        if hasqk and haspv:
            rs = [r for sp in range(2) for db in range(4) for r in v_reads(i - 1, sp, db)]
            spread(mem, rs, 0, 13)
            if i % 2 == 1: pre[npv0] = [wait_lg(0)]
        if i in (14, 15):
            for sp in range(2):
                for db in range(4):
                    for r in v_reads(i, sp, db): mem.setdefault(npv0 + 8 * sp + 2 * db + 1, []).append(r)
        if hasqk and i >= 1: pre[0] = [wait_lg(0)]
        if dma:
            if i == 0: spread(mem, dma, 2, 16)
            else: spread(mem, dma, npv0 + 8, n)
        if tail_items and i in tail_items: spread(mem, tail_items[i], 0, n)
        if 0 <= i <= 15:
            seq = softmax_items(i)
            if n == 32:
                for e in range(32): val.setdefault(e, []).extend(seq[e])
                val[31].extend(seq[32])
            else:
                for e in range(32): val.setdefault(e // 2, []).extend(seq[e])
                val[15].extend(seq[32])
        if OPT['core_order'] == 'mv': fill = {k: mem.get(k, []) + val.get(k, []) for k in range(n)}
        elif OPT['core_order'] == 'vm': fill = {k: val.get(k, []) + mem.get(k, []) for k in range(n)}
        else: fill = {k: val.get(k, [])[:1] + mem.get(k, []) + val.get(k, [])[1:] for k in range(n)}
        interleave(a, mf, fill, pre)


def o_epilogue(a, store=True, sc=''):
    T = V_S
    for Qb in range(2):
        a.e(f'v_mov_b32 v{T + Qb}, v{V_L + Qb}')
    for Qb in range(2):
        a.e(f'v_permlane32_swap_b32 v{T + Qb}, v{V_L + Qb}')
    for Qb in range(2):
        a.e(f'v_add_f32 v{V_L + Qb}, v{V_L + Qb}, v{T + Qb}')
    for Qb in range(2):
        a.e(f'v_rcp_f32 v{T + Qb}, v{V_L + Qb}')
    t0, t1 = T + 2, T + 3
    a.e(f'v_bfe_u32 v{t0}, v0, 4, 1')
    a.e(f'v_lshlrev_b32 v{t0}, 17, v{t0}')
    a.e(f'v_lshrrev_b32 v{t1}, 5, v0')
    a.e(f'v_lshl_add_u32 v{t0}, v{t1}, 9, v{t0}')
    a.e(f'v_and_b32 v{t1}, 15, v0')
    a.e(f'v_lshl_add_u32 v{t0}, v{t1}, 4, v{t0}')
    a.e(f's_lshl_b32 s88, s{S_RB}, 2')
    a.e(f's_add_u32 s88, s88, s{S_W}')
    a.e(f's_lshl_b32 s88, s88, 19')
    a.e(f's_lshl_b32 s89, s{S_H}, 12')
    a.e(f's_add_u32 s88, s88, s89')
    a.e(f's_add_u32 s88, s88, {WS_O}')
    a.e(f's_add_u32 s89, s88, 262144')
    for Qb in range(2):
        for db in range(4):
            d = O(db, Qb)
            for p in range(0, 16, 2):
                a.e(f'v_pk_mul_f32 {v(d + p, 2)}, {v(d + p, 2)}, {v(T, 2)} op_sel:[0,{Qb}] op_sel_hi:[1,{Qb}]')
            for p in range(8):
                a.e(f'v_cvt_pk_bf16_f32 v{d + p}, v{d + 2 * p}, v{d + 2 * p + 1}')
            if store:
                for t in range(2):
                    a.e(f'buffer_store_dwordx4 {v(d + 4 * t, 4)}, v{t0}, {srd("ws")}, s{88 + Qb} offen offset:{db * 1024 + t * 256} {sc}', 'ost')


def attn_kernel(name, sc=''):
    a = Asm()
    end = name + '_end'
    prologue(a, ['x', 'wq', 'w1', 'k', 'v', 'ws', 'h'], 256, end)
    decode_wg(a)
    qp_setup(a)
    for c in range(2 if OPT['qp_dma'] == 'spread' else 3):
        for it in qp_dma_items(c): put(a, it)
    qp_setup_reads(a)
    core_setup(a)
    stamp(a, 1)
    qp_main(a, {14: stats_loads()})
    stamp(a, 3)
    qp_epilogue(a, sc)
    stamp(a, 4)
    core(a)
    stamp(a, 5)
    o_epilogue(a, True, sc)
    stamp(a, 6)
    a.wait_all()
    stamp(a, 7)
    stamp_flush(a)
    a.raw(end + ':')
    a.e('s_endpgm')
    a.pad()
    return a
```

```python
import sys
from build_v1 import *
STAMPS['on'] = True
ks = [('k0_kernel', gemms.k0_kernel('k0_kernel'), 256, 4096)]
variants = eval(sys.argv[2])
for i, o in enumerate(variants):
    saved = dict(attn.OPT); attn.OPT.update(o)
    n = f'attn{i}_kernel'
    ks.append((n, attn.attn_kernel(n, 'sc1'), 256, attn.LDS_ATT))
    attn.OPT.clear(); attn.OPT.update(saved)
build(ks, sys.argv[1])
```
